```python
import torch

def _softmax(x, axis=-1):
    return torch.softmax(x, dim=axis)

def _gelu(x):
    return torch.nn.functional.gelu(x, approximate='tanh')

def _silu(x):
    return torch.nn.functional.silu(x)

def _sigmoid(x):
    return torch.sigmoid(x)

def _layernorm(x, axis=-1, eps=1e-05):
    m = x.mean(dim=axis, keepdim=True)
    v = x.var(dim=axis, keepdim=True, unbiased=False)
    return (x - m) / torch.sqrt(v + eps)

def _scatter_add(tgt, idx, src, axis=0):
    return tgt.clone().index_add_(axis, idx, src)

def _segment_sum(src, seg, n):
    out = torch.zeros((n,) + src.shape[1:], dtype=src.dtype)
    return out.index_add_(0, seg, src)

def _pad(x, pw):
    flat = tuple((v for pair in reversed(pw) for v in pair))
    return torch.nn.functional.pad(x, flat)
kernel_name = 'interleave_layers__memory_aug_recurrent_mem_tr__spectral_gfnet__prompt'

def setup_inputs():

    _w = lambda a: (lambda t: t.to(torch.bfloat16) if t.is_floating_point() else t)(torch.as_tensor(a))

    def _A_setup():
        B, S, Dm = (1, 2048, 640)
        H, Dh = (32, 128)
        M, seg = (8, 32)
        seg = min(seg, S)
        S = S // seg * seg
        return {'x': _w((lambda *s: torch.randn(*s, dtype=torch.bfloat16) * 0.05)(B, S, Dm)), 'mem0': _w((lambda *s: torch.randn(*s, dtype=torch.bfloat16) * 0.2)(B, M, Dm)), 'Wq': _w((lambda *s: torch.randn(*s, dtype=torch.bfloat16) * 1.6)(Dm, H, Dh) * Dm ** (-0.5)), 'Wk': _w((lambda *s: torch.randn(*s, dtype=torch.bfloat16) * 1.6)(Dm, H, Dh) * Dm ** (-0.5)), 'Wv': _w((lambda *s: torch.randn(*s, dtype=torch.bfloat16) * 0.2)(Dm, H, Dh) * Dm ** (-0.5)), 'Wo': _w((lambda *s: torch.randn(*s, dtype=torch.bfloat16) * 0.2)(H, Dh, Dm) * (H * Dh) ** (-0.5)), 'seg_len': seg}
    _A_in = _A_setup()

    def _B_setup():
        B, S, D = (1, 2048, 640)
        Df = D // 2 + 1
        return {'x': _w((lambda *s: torch.randn(*s, dtype=torch.bfloat16) * 0.05)(B, S, D)), 'w_r': _w((lambda *s: torch.randn(*s, dtype=torch.bfloat16) * 0.4)(S, Df) * 0.02), 'w_i': _w((lambda *s: torch.randn(*s, dtype=torch.bfloat16) * 0.4)(S, Df) * 0.02)}
    _B_in = _B_setup()
    return {'A_x': _A_in['x'], 'A_mem0': _A_in['mem0'], 'A_Wq': _A_in['Wq'], 'A_Wk': _A_in['Wk'], 'A_Wv': _A_in['Wv'], 'A_Wo': _A_in['Wo'], 'A_seg_len': _A_in['seg_len'], 'B_x': _B_in['x'], 'B_w_r': _B_in['w_r'], 'B_w_i': _B_in['w_i']}

def reference(A_x, A_mem0, A_Wq, A_Wk, A_Wv, A_Wo, A_seg_len, B_x, B_w_r, B_w_i):

    def _A_ref(x, mem0, Wq, Wk, Wv, Wo, seg_len):
        B, S, Dm = x.shape
        H, Dh = (Wq.shape[1], Wq.shape[2])
        M = mem0.shape[1]
        scale = Dh ** (-0.5)
        n_seg = S // seg_len
        L = M + seg_len
        idx = torch.arange(L)
        mask = (idx[:, None] < M) | (idx[:, None] >= idx[None, :])
        mem = mem0
        outs = []
        for s in range(n_seg):
            xs = x[:, s * seg_len:(s + 1) * seg_len, :].clone()
            h = torch.concatenate([mem, xs], axis=1)
            q = torch.einsum('btd,dhe->bhte', h, Wq)
            k = torch.einsum('btd,dhe->bhte', h, Wk)
            v = torch.einsum('btd,dhe->bhte', h, Wv)
            scores = torch.einsum('bhqe,bhke->bhqk', q, k) * scale
            scores = torch.where(mask[None, None], scores, -1000000000.0)
            p = _softmax(scores, axis=-1)
            o = torch.einsum('bhqk,bhke->bhqe', p, v)
            o = torch.einsum('bhte,hed->btd', o, Wo)
            mem = o[:, :M, :].clone()
            outs.append(o[:, M:, :])
        return torch.concatenate(outs, axis=1)

    def _B_ref(x, w_r, w_i):
        B, S, D = x.shape
        X = (lambda x, axes=(-2, -1): torch.fft.rfft2(x.float(), dim=axes))(x, axes=(-2, -1))
        W = w_r + 1j * w_i
        X = X * W
        y = (lambda x, s, axes=(-2, -1): torch.fft.irfft2(x, s=s, dim=axes).to(torch.bfloat16))(X, (S, D), axes=(-2, -1))
        return y
    x = A_x
    x = x + _A_ref(_layernorm(x, axis=-1), A_mem0, A_Wq, A_Wk, A_Wv, A_Wo, A_seg_len)
    x = x + _B_ref(_layernorm(x, axis=-1), B_w_r, B_w_i)
    x = x + _A_ref(_layernorm(x, axis=-1), A_mem0, A_Wq, A_Wk, A_Wv, A_Wo, A_seg_len)
    x = x + _B_ref(_layernorm(x, axis=-1), B_w_r, B_w_i)
    return x
```

```python
import re, sys

REG_RE = re.compile(r'^(-|\|)?([vas])(\d+|\[(\d+):(\d+)\])\|?$')

TRANS = ('v_exp_', 'v_log_', 'v_rcp_', 'v_rsq_', 'v_sqrt_', 'v_sin_', 'v_cos_')


def parse_reg(tok):
    tok = tok.strip()
    if tok in ('vcc', 'exec'):
        return [('s', tok + '_lo'), ('s', tok + '_hi')]
    if tok in ('vcc_lo', 'vcc_hi', 'exec_lo', 'exec_hi', 'm0'):
        return [('s', tok)]
    t = tok
    if t.startswith('-'):
        t = t[1:]
    if t.startswith('|') and t.endswith('|'):
        t = t[1:-1]
    m = re.match(r'^([vas])(\d+)$', t)
    if m:
        return [(m.group(1), int(m.group(2)))]
    m = re.match(r'^([vas])\[(\d+):(\d+)\]$', t)
    if m:
        return [(m.group(1), i) for i in range(int(m.group(2)), int(m.group(3)) + 1)]
    return []


class Ins:
    __slots__ = ('text', 'op', 'ops', 'mods', 'kind', 'dst', 'src', 'passes', 'label', 'target',
                 'srcA', 'srcB', 'srcC', 'pre_nop', 'pre_vm', 'pre_lg', 'nopn', 'wvm', 'wlg', 'dpp',
                 'trans', 'data', 'wide', 'ldsdma', 'cnt', 'line')

    def __init__(self, text):
        self.text = text
        self.label = None
        self.target = None
        self.pre_nop = 0
        self.pre_vm = None
        self.pre_lg = None
        self.nopn = 0
        self.wvm = None
        self.wlg = None
        self.dst = []
        self.src = []
        self.srcA = self.srcB = self.srcC = []
        self.passes = 0
        self.dpp = False
        self.trans = False
        self.data = []
        self.wide = False
        self.ldsdma = False
        self.cnt = None
        t = text.split(';')[0].strip()
        if t.endswith(':'):
            self.kind = 'label'
            self.label = t[:-1]
            self.op = ''
            return
        if t.startswith('@need'):
            self.kind = 'need'
            self.op = '@need'
            self.mods = ''
            self.src = [r for o in t[5:].split(',') for r in parse_reg(o)]
            return
        if t.startswith('@raw'):
            self.kind = 'salu'
            self.text = t[4:].strip()
            self.op = 's_raw'
            self.mods = ''
            return
        p = t.split(None, 1)
        op = self.op = p[0]
        rest = p[1] if len(p) > 1 else ''
        parts = [x.strip() for x in rest.split(',')] if rest else []
        ops = []
        mods = ''
        for i, x in enumerate(parts):
            if ' ' in x:
                a, b = x.split(None, 1)
                ops.append(a)
                mods = b + ',' + ','.join(parts[i + 1:])
                break
            ops.append(x)
        self.ops = ops
        self.mods = mods
        R = [parse_reg(o) for o in ops]
        allsrc = lambda k: [r for x in R[k:] for r in x]
        if op.startswith('s_'):
            self.kind = 'salu'
            if op == 's_nop':
                self.nopn = int(ops[0])
            elif op == 's_waitcnt':
                m = re.search(r'vmcnt\((\d+)\)', t)
                if m: self.wvm = int(m.group(1))
                m = re.search(r'lgkmcnt\((\d+)\)', t)
                if m: self.wlg = int(m.group(1))
            elif op.startswith('s_cbranch') or op == 's_branch':
                self.kind = 'branch'
                self.target = ops[0]
                if 'vcc' in op: self.src = parse_reg('vcc')
                if 'exec' in op: self.src = parse_reg('exec')
            elif op == 's_endpgm':
                self.kind = 'end'
            elif op.startswith('s_load') or op.startswith('s_buffer_load') or op in ('s_memtime', 's_memrealtime'):
                self.kind = 'smem'
                self.cnt = 'sm'
                self.dst = R[0]
                self.src = allsrc(1)
            elif op.startswith('s_cmp') or op.startswith('s_bitcmp') or op in ('s_barrier', 's_setprio', 's_sleep', 's_setreg_b32', 's_setreg_imm32_b32'):
                self.src = allsrc(0)
            else:
                self.dst = R[0] if R else []
                self.src = allsrc(1)
                if 'saveexec' in op:
                    self.dst = self.dst + parse_reg('exec')
                if op.startswith('s_addk') or op.startswith('s_cmov') or op.startswith('s_bitset'):
                    self.src = self.src + R[0]
        elif op.startswith('v_mfma') or op.startswith('v_smfmac'):
            self.kind = 'mfma'
            self.passes = 8 if ('32x32x' in op) else 4
            self.dst = R[0]
            self.srcA, self.srcB = R[1], R[2]
            if op.startswith('v_smfmac'):
                self.srcC = R[0]
                self.srcB = R[2] + R[3]
            else:
                self.srcC = R[3]
            self.src = self.srcA + self.srcB + self.srcC
        elif op.startswith('v_'):
            self.kind = 'valu'
            self.trans = op.startswith(TRANS)
            self.dpp = ('row_' in mods or 'quad_perm' in mods or 'wave_' in mods or op.endswith('_dpp'))
            if 'permlane' in op and 'swap' in op or op == 'v_swap_b32':
                self.dst = R[0] + R[1]
                self.src = R[0] + R[1]
            elif op.startswith('v_cmpx'):
                self.dst = R[0] + parse_reg('exec')
                self.src = allsrc(1)
            elif re.match(r'v_(add|sub|subrev|addc|subb|subbrev)_co_', op) or op.startswith('v_div_scale') or op.startswith('v_mad_u64'):
                self.dst = R[0] + R[1]
                self.src = allsrc(2)
            else:
                self.dst = R[0]
                self.src = allsrc(1)
                if self.dpp or op.startswith(('v_fmac', 'v_mac', 'v_pk_fmac', 'v_dot2c', 'v_writelane')) or 'UNUSED_PRESERVE' in mods or 'op_sel' in mods and not op.startswith('v_pk'):
                    self.src = self.src + R[0]
        elif op.startswith('ds_'):
            self.kind = 'ds'
            self.cnt = 'lg'
            if op.startswith('ds_read') or '_rtn' in op or op.startswith(('ds_bpermute', 'ds_permute', 'ds_swizzle')):
                self.dst = R[0]
                self.src = allsrc(1)
            else:
                self.src = allsrc(0)
        elif op.startswith(('buffer_', 'global_', 'flat_')):
            self.kind = 'vmem'
            self.cnt = 'vm'
            mm = set(mods.replace(',', ' ').split())
            if op in ('buffer_wbl2', 'buffer_inv'):
                pass
            elif 'lds' in mm or '_lds_' in op:
                self.ldsdma = True
                self.src = allsrc(0) + [('s', 'm0')]
            elif '_load' in op:
                self.dst = R[0]
                self.src = allsrc(1)
            elif '_store' in op:
                self.src = allsrc(0)
                self.data = R[0] if op.startswith('buffer_') else R[1]
                self.wide = op.endswith(('x3', 'x4'))
            elif '_atomic' in op:
                if op.startswith('buffer_'):
                    self.src = allsrc(0)
                    if 'sc0' in mm: self.dst = R[0]
                else:
                    if 'sc0' in mm:
                        self.dst = R[0]
                        self.src = allsrc(1)
                    else:
                        self.src = allsrc(0)
            else:
                raise ValueError(text)
        else:
            raise ValueError('unknown instr: ' + text)


def need_states(p, c, tight):
    n = 0
    pd = p.dst
    if p.kind == 'valu':
        if pd:
            spd = set(pd)
            vg = [r for r in pd if r[0] != 's']
            sg = [r for r in pd if r[0] == 's']
            if vg:
                hit = any(r in spd for r in c.src if r[0] != 's')
                if hit:
                    if c.kind == 'mfma': n = max(n, 2)
                    if c.kind == 'valu':
                        if c.dpp or 'permlane' in c.op: n = max(n, 2)
                        if c.op.startswith(('v_readlane', 'v_readfirstlane')): n = max(n, 1)
                        if p.trans: n = max(n, 1)
                        if ('op_sel' in p.mods and not p.op.startswith('v_pk')) or 'dst_sel' in p.mods: n = max(n, 1)
            if vg and p.op.startswith('v_dot') and c.op != p.op and any(r in spd for r in c.src + c.dst): n = max(n, 3)
            if sg:
                hit = any(r in spd for r in c.src if r[0] == 's')
                if hit:
                    if c.kind == 'valu':
                        n = max(n, 4 if c.op.startswith(('v_readlane', 'v_writelane', 'v_div_fmas')) else 2)
                    if c.kind == 'vmem': n = max(n, 5)
                if ('s', 'vcc_lo') in spd and c.op.startswith('v_div_fmas'): n = max(n, 4)
                if ('s', 'exec_lo') in spd:
                    if c.kind == 'mfma': n = max(n, 4)
                    if c.kind == 'valu':
                        if c.dpp: n = max(n, 5)
                        if 'lane' in c.op: n = max(n, 4)
    elif p.kind == 'mfma':
        spd = set(pd)
        big = p.passes == 8
        if c.kind == 'mfma':
            if any(r in spd for r in c.srcA) or any(r in spd for r in c.srcB):
                n = max(n, 12 if big else 8)
            if any(r in spd for r in c.srcC):
                if not (c.srcC == pd and c.op == p.op):
                    n = max(n, 10 if big else 6)
            elif any(r in spd for r in c.dst):
                if c.passes != p.passes: n = max(n, 10 if big else 6)
        elif c.kind in ('valu', 'vmem', 'ds'):
            hit = [r for r in c.src + c.dst if r in spd]
            if hit:
                k = 12 if big else 8
                if tight and not big and c.kind == 'valu' and not c.dpp and 'lane' not in c.op and all(pd.index(r) < 2 for r in hit): k = 7
                n = max(n, k)
            if c.kind == 'valu' or c.dst:
                sc = set(p.srcC)
                if any(r in sc for r in c.dst): n = max(n, 7 if big else 3)
    elif p.kind == 'vmem':
        if p.wide and c.dst:
            sd = set(p.data)
            if any(r in sd for r in c.dst): n = max(n, 2)
    elif p.kind == 'salu':
        if ('s', 'm0') in pd and (c.ldsdma or 'addtid' in c.op): n = max(n, 1)
        if p.op.startswith('s_setreg') and c.op.startswith(('s_getreg', 's_setreg')): n = max(n, 2)
    return n


class Prog:
    def __init__(self, name, tight=True):
        self.name = name
        self.ins = []
        self.tight = tight
        self.uid = 0
        self.verbose = False

    def __call__(self, text):
        for ln in text.split('\n'):
            t = ln.split(';')[0].strip()
            if t:
                self.ins.append(Ins(t))

    def lbl(self, base):
        self.uid += 1
        return f"{self.name}_{base}_{self.uid}"

    def _cfg(self):
        ins = self.ins
        lab = {x.label: i for i, x in enumerate(ins) if x.kind == 'label'}
        n = len(ins)
        succ = [[] for _ in range(n)]
        pred = [[] for _ in range(n)]
        for i, x in enumerate(ins):
            if x.kind == 'end':
                continue
            if x.kind == 'branch':
                succ[i].append(lab[x.target])
                if x.op != 's_branch' and i + 1 < n: succ[i].append(i + 1)
            elif i + 1 < n:
                succ[i].append(i + 1)
        for i in range(n):
            for s in succ[i]: pred[s].append(i)
        return succ, pred

    def _waits(self, succ):
        ins = self.ins
        n = len(ins)
        changed_any = True
        while changed_any:
            changed_any = False
            state = [None] * n
            state[0] = ({}, {})
            work = [0]
            inwork = {0}
            while work:
                i = work.pop()
                inwork.discard(i)
                vm, lg = state[i]
                vm = dict(vm); lg = dict(lg)
                x = ins[i]
                if x.kind != 'label':
                    touched = x.src + x.dst
                    need = None
                    for r in touched:
                        if r in vm:
                            if x.cnt == 'vm' and r in x.dst and r not in x.src: continue
                            need = vm[r] if need is None else min(need, vm[r])
                    if need is not None and (x.pre_vm is None or need < x.pre_vm):
                        x.pre_vm = need; changed_any = True
                    need = None
                    for r in touched:
                        if r in lg:
                            if x.cnt == 'lg' and r in x.dst and r not in x.src and lg[r] >= 0: continue
                            v = max(lg[r], 0)
                            need = v if need is None else min(need, v)
                    if need is not None:
                        if any(v < 0 for v in lg.values()): need = 0
                        if x.pre_lg is None or need < x.pre_lg:
                            x.pre_lg = need; changed_any = True
                    for w in (x.pre_vm, x.wvm):
                        if w is not None:
                            vm = {r: v for r, v in vm.items() if v < w}
                    for w in (x.pre_lg, x.wlg):
                        if w is not None:
                            if w == 0: lg = {}
                            elif not any(v < 0 for v in lg.values()):
                                lg = {r: v for r, v in lg.items() if v < w}
                    if x.cnt == 'vm':
                        vm = {r: min(v + 1, 63) for r, v in vm.items()}
                        for r in x.dst: vm[r] = 0
                    elif x.cnt == 'lg':
                        lg = {r: (min(v + 1, 15) if v >= 0 else v) for r, v in lg.items()}
                        for r in x.dst: lg[r] = 0
                    elif x.cnt == 'sm':
                        for r in x.dst: lg[r] = -1
                for s in succ[i]:
                    if state[s] is None:
                        state[s] = (vm, lg); upd = True
                    else:
                        a, b = state[s]
                        upd = False
                        na, nb = a, b
                        for r, v in vm.items():
                            if r not in a or v < a[r]:
                                if na is a: na = dict(a)
                                na[r] = v; upd = True
                        for r, v in lg.items():
                            if r not in b or v < b[r]:
                                if nb is b: nb = dict(b)
                                nb[r] = v; upd = True
                        state[s] = (na, nb)
                    if upd and s not in inwork:
                        work.append(s); inwork.add(s)

    def _nops(self, pred):
        ins = self.ins
        MAXD = 13
        changed = True
        while changed:
            changed = False
            for ci, c in enumerate(ins):
                if c.kind not in ('valu', 'mfma', 'vmem', 'ds', 'salu'): continue
                if c.kind == 'salu' and not c.op.startswith(('s_getreg', 's_setreg')): continue
                base = c.pre_nop + (1 if (c.pre_vm is not None or c.pre_lg is not None) else 0)
                stack = [(p, base, (0 if c.kind == 'mfma' else None)) for p in pred[ci]]
                seen = set()
                worst = 0
                while stack:
                    pi, d, lastm = stack.pop()
                    if (pi, d, lastm) in seen: continue
                    seen.add((pi, d, lastm))
                    p = ins[pi]
                    if p.kind == 'label':
                        for q in pred[pi]: stack.append((q, d, lastm))
                        continue
                    if p.kind == 'need':
                        e = 1 if (p.pre_vm is not None or p.pre_lg is not None) else 0
                        for q in pred[pi]: stack.append((q, d + e, lastm))
                        continue
                    dd = d
                    if p.kind == 'mfma' and lastm is not None:
                        dd = max(d, lastm + p.passes - 1)
                    k = need_states(p, c, self.tight)
                    if k > dd:
                        add = k - d if (lastm == 0 and c.kind == 'mfma' and dd > d) else k - dd
                        worst = max(worst, add)
                    nd = dd + 1 + p.nopn
                    nl = lastm
                    if p.kind == 'mfma': nl = dd + 1
                    nd += p.pre_nop + (1 if (p.pre_vm is not None or p.pre_lg is not None) else 0)
                    if nd < MAXD:
                        for q in pred[pi]: stack.append((q, nd, nl))
                if worst > 0:
                    c.pre_nop += worst
                    changed = True

    def finish(self):
        succ, pred = self._cfg()
        self._waits(succ)
        self._nops(pred)
        out = []
        self.n_nop = self.n_wait = 0
        for x in self.ins:
            if x.pre_vm is not None or x.pre_lg is not None:
                w = 's_waitcnt'
                if x.pre_vm is not None: w += f' vmcnt({x.pre_vm})'
                if x.pre_lg is not None: w += f' lgkmcnt({x.pre_lg})'
                out.append(w + ' ; auto')
                self.n_wait += 1
            k = x.pre_nop
            while k > 0:
                m = min(k, 16)
                out.append(f's_nop {m - 1} ; auto')
                self.n_nop += 1
                k -= m
            if x.kind != 'need': out.append(x.text)
        return '\n'.join(out) + '\n'


def kernel_text(name, body, vgpr=512, accum=256):
    return (f".text\n.globl {name}\n.p2align 8\n.type {name},@function\n{name}:\n{body}"
            f".section .rodata,\"a\"\n.p2align 6\n.amdhsa_kernel {name}\n"
            f"  .amdhsa_next_free_vgpr {vgpr}\n  .amdhsa_next_free_sgpr 102\n  .amdhsa_accum_offset {accum}\n"
            f"  .amdhsa_group_segment_fixed_size 0\n  .amdhsa_kernarg_size 104\n  .amdhsa_user_sgpr_count 2\n"
            f"  .amdhsa_user_sgpr_kernarg_segment_ptr 1\n  .amdhsa_system_sgpr_workgroup_id_x 1\n"
            f"  .amdhsa_float_denorm_mode_32 3\n.end_amdhsa_kernel\n")


def rr(kind, base, n):
    return f"{kind}{base}" if n == 1 else f"{kind}[{base}:{base + n - 1}]"


def V(base, n=1): return rr('v', base, n)
def A(base, n=1): return rr('a', base, n)
def S(base, n=1): return rr('s', base, n)
```

```python
from asmlib import *
from layout import *
from worker import *
import worker

mm32 = lambda d, a, b, c: f"v_mfma_f32_16x16x32_bf16 {V(d,4)}, {V(a,4)}, {V(b,4)}, {c}"
mm16 = lambda d, a, b, c: f"v_mfma_f32_16x16x16_bf16 {V(d,4)}, {V(a,2)}, {V(b,2)}, {c}"


def at_main(P, nlay):
    vSt, vFo, T = 1, 2, 192
    vO = [vL16, 3, 18, 19]
    BI, ONE, HALF, POI = 4, 12, 16, 20
    Q, KX, VX, KT, VB, S_, PB, PM, DEN, O = 24, 40, 72, 104, 120, 136, 148, 152, 156, 160
    sKV, sQ, sKM, sO, sSeen, sFp, sFa, sC, sQt = sRb, sWb, sSrc, sDst, sStr, sD, sB0, sB1, sN
    P(f"""s_and_b32 s{sQt}, s{sW}, 1
s_lshr_b32 s{sT0}, s{sW}, 1
s_add_u32 s{sProg}, s{sT0}, 1
s_lshl_b32 s{sT1}, s{sT0}, 5
s_add_u32 s{sT1}, s{sT1}, s{sX}
s_lshl_b32 s{sKV}, s{sT1}, 14
s_add_u32 s{sKV}, s{sKV}, {KV_OFF[0]}
s_lshl_b32 s{sT1}, s{sT1}, 13
s_add_u32 s{sKM}, s{sT1}, {KM_OFF[0]}
s_lshl_b32 s{sQ}, s{sQt}, 10
s_add_u32 s{sQ}, s{sQ}, s{sT1}
s_add_u32 s{sQ}, s{sQ}, {Q_OFF[0]}
s_lshl_b32 s{sO}, s{sW}, 17
s_lshl_b32 s{sT1}, s{sX}, 11
s_add_u32 s{sO}, s{sO}, s{sT1}
s_add_u32 s{sO}, s{sO}, {O_OFF[0]}
s_lshl_b32 s{sFp}, s{sX}, 6
s_add_u32 s{sFp}, s{sFp}, {FL_P}
s_lshl_b32 s{sFa}, s{sW}, 8
s_lshl_b32 s{sT1}, s{sX}, 2
s_add_u32 s{sFa}, s{sFa}, s{sT1}
s_add_u32 s{sFa}, s{sFa}, {FL_A}
s_mov_b32 s{sSeen}, 0
s_mov_b32 s{sC}, {fl(128**-0.5*1.4426950408889634)}
v_bfe_u32 v{T}, v{vL16}, 7, 1
v_and_b32 v{vSt}, 0x370, v{vL16}
v_lshl_add_u32 v{vSt}, v{T}, 16, v{vSt}
v_mov_b32 v{vFo}, {OOB}
v_cmp_eq_u32 vcc, 0, v{vL16}
v_cndmask_b32 v{vFo}, v{vFo}, 0, vcc
v_bfe_u32 v{T}, v{vL16}, 4, 4
s_lshl_b32 s{sT0}, s{sQt}, 4
v_add_u32 v{T}, s{sT0}, v{T}
v_lshrrev_b32 v{T+1}, 8, v{vL16}
v_lshlrev_b32 v{T+1}, 2, v{T+1}
v_sub_u32 v{T}, v{T}, v{T+1}
v_mov_b32 v{T+1}, 0xff800000""")
    for k in range(1, 4): P(f"v_add_u32 v{vO[k]}, {4096*k}, v{vL16}")
    for m in range(8):
        P(f"v_cmp_le_i32 vcc, {16*(m//4) + m%4}, v{T}\nv_cndmask_b32 v{BI+m}, v{T+1}, 0, vcc")
    for r in range(4): P(f"v_mov_b32 v{ONE+r}, 0x3f803f80\nv_mov_b32 v{POI+r}, -1")
    for r in range(2): P(f"v_mov_b32 v{HALF+r}, 0x3f003f00")
    wait_dbg(P, D_INIT2, 32, T)
    top, ck, cd, nopo, pr, prd, pk, pkd, pv, pvd, nosw = (P.lbl(x) for x in 'top ck cd nopo pr prd pk pkd pv pvd nosw'.split())
    ld = lambda d, v, s, o: f"buffer_load_dwordx4 {V(d,4)}, v{v}, {wsr}, s{s} offen offset:{o} sc1"
    P(f"""{top}:
s_cmp_ge_u32 s{sSeen}, s{sProg}
s_cbranch_scc1 {cd}
{ck}:
buffer_load_dwordx3 {V(T,3)}, off, {wsr}, s{sFp} sc1
v_min3_u32 v{T}, v{T}, v{T+1}, v{T+2}
v_readfirstlane_b32 s{sSeen}, v{T}
s_cmp_ge_u32 s{sSeen}, s{sProg}
s_cbranch_scc1 {cd}""")
    spin_tail(P, ck, 4)
    P(f"{cd}:")
    for w in range(4):
        P(ld(Q + 4 * w, vO[w // 2], sQ, 2048 * (w % 2)))
        for k in range(2): P(ld(KX + 8 * w + 4 * k, vO[w], sKV, 1024 * k))
    for w in range(4):
        for k in range(2): P(ld(VX + 8 * w + 4 * k, vO[w], sKV, 2048 + 1024 * k))
    for w in range(4):
        for k in range(2):
            P(mm32(S_ + 4 * k, KX + 8 * w + 4 * k, Q + 4 * w, V(S_ + 4 * k if w else BI + 4 * k, 4)))
    P(f"""s_cmp_gt_u32 s{sProg}, 64
s_cbranch_scc1 {nopo}
s_lshl_b32 s{sT0}, s{sQt}, 12
s_add_u32 s{sT0}, s{sT0}, s{sKM}
s_add_u32 s{sT0}, s{sT0}, {KM_OFF[1]-KM_OFF[0]}""")
    for k in range(4): P(f"buffer_store_dwordx4 {V(POI,4)}, v{vL16}, {wsr}, s{sT0} offen offset:{1024*k} sc1")
    mx, m2 = T + 4, T + 5
    P(f"""{nopo}:
v_max3_f32 v{mx}, v{S_}, v{S_+1}, v{S_+2}
v_max3_f32 v{mx}, v{mx}, v{S_+3}, v{S_+4}
v_max3_f32 v{mx}, v{mx}, v{S_+5}, v{S_+6}
v_max_f32 v{mx}, v{mx}, v{S_+7}
{pr}:
buffer_load_dword v{T}, off, {wsr}, s{sKM} sc1
v_cmp_eq_u32 vcc, -1, v{T}
s_cbranch_vccz {prd}""")
    spin_tail(P, pr, 2)
    P(f"{prd}:\n{pk}:")
    for w in range(4): P(ld(KT + 4 * w, vO[w // 2], sKM, 2048 * (w % 2)))
    for w in range(4): P(ld(VB + 4 * w, vO[w // 2], sKM, 2048 * (w % 2) + 1024))
    for w in range(4): P(mm32(S_ + 8, KT + 4 * w, Q + 4 * w, V(S_ + 8, 4) if w else '0'))
    P(f"""v_max3_u32 v{T}, v{KT}, v{KT+4}, v{KT+8}
v_max_u32 v{T}, v{T}, v{KT+12}
v_cmp_eq_u32 vcc, -1, v{T}
s_cbranch_vccz {pkd}""")
    spin_tail(P, pk, 0)
    P(f"""{pkd}:
v_max3_f32 v{mx}, v{mx}, v{S_+8}, v{S_+9}
v_max3_f32 v{mx}, v{mx}, v{S_+10}, v{S_+11}
v_mov_b32 v{m2}, v{mx}
v_permlane32_swap_b32 v{mx}, v{m2}
v_max_f32 v{mx}, v{mx}, v{m2}
v_mov_b32 v{m2}, v{mx}
v_permlane16_swap_b32 v{mx}, v{m2}
v_max_f32 v{mx}, v{mx}, v{m2}
v_mul_f32 v{mx}, s{sC}, v{mx}""")
    for r in range(12): P(f"v_fma_f32 v{S_+r}, v{S_+r}, s{sC}, -v{mx}\nv_exp_f32 v{S_+r}, v{S_+r}")
    for r in range(6): P(cvt(PB + r, S_ + 2 * r))
    P(mm32(DEN, ONE, PB, '0'))
    for k in range(8):
        P(mm32(O + 4 * k, VX + 4 * k, PB, '0'))
        if k == 1: P(mm16(DEN, HALF, PM, V(DEN, 4)))
    P(f"""v_rcp_f32 v{DEN}, v{DEN}
s_branch {pvd}
{pv}:""")
    for w in range(4): P(ld(VB + 4 * w, vO[w // 2], sKM, 2048 * (w % 2) + 1024))
    P(f"""s_sub_u32 s{sBud}, s{sBud}, 1
{pvd}:
v_max3_u32 v{T}, v{VB}, v{VB+4}, v{VB+8}
v_max_u32 v{T}, v{T}, v{VB+12}
v_cmp_eq_u32 vcc, -1, v{T}
s_cmp_gt_i32 s{sBud}, 0
s_cselect_b64 vcc, vcc, 0
s_cbranch_vccnz {pv}""")
    for k in range(8): P(mm16(O + 4 * k, VB + 2 * k, PM, V(O + 4 * k, 4)))
    for w in range(4):
        b = O + 8 * w
        for r in range(8): P(f"v_mul_f32 v{b+r}, v{DEN}, v{b+r}")
        for r in range(4): P(cvt(b + r, b + 2 * r))
        P(f"buffer_store_dwordx4 {V(b,4)}, v{vSt}, {wsr}, s{sO} offen offset:{1024*(w//2) + 128*(w%2)} sc1")
    P(f"""v_mov_b32 v{T}, s{sProg}
s_add_u32 s{sKV}, s{sKV}, {2*KV_SEG}
s_add_u32 s{sQ}, s{sQ}, {2*Q_SEG}
s_add_u32 s{sKM}, s{sKM}, {2*KM_SEG}
s_add_u32 s{sO}, s{sO}, {2*O_SEG}
s_waitcnt vmcnt(0)
buffer_store_dword v{T}, v{vFo}, {wsr}, s{sFa} offen sc1
s_add_u32 s{sProg}, s{sProg}, 2
s_sub_u32 s{sT0}, s{sProg}, 65
s_cmp_lt_u32 s{sT0}, 2
s_cbranch_scc0 {nosw}""")
    stamp(P, 3)
    assert Q_OFF[1] - Q_OFF[0] == 64 * Q_SEG and KM_OFF[1] - KM_OFF[0] == 64 * KM_SEG
    P(f"""s_add_u32 s{sKV}, s{sKV}, {KV_OFF[1]-KV_OFF[0]-64*KV_SEG}
s_add_u32 s{sO}, s{sO}, {O_OFF[1]-O_OFF[0]-64*O_SEG}
{nosw}:
s_cmp_le_u32 s{sProg}, {64*nlay}
s_cbranch_scc1 {top}""")
    stamp(P, 4)
    P("s_waitcnt vmcnt(0) lgkmcnt(0)\ns_barrier")


def o_main(P, nlay):
    vIdx, vFl, vWr, vRd_, vZ, vY, vS, vF, vMk = 1, 2, 3, 4, 5, 6, 7, 8, 9
    vO = [vL16, 10, 11, 12]
    ZR, RES, AC, T, AF = 14, 16, 24, 96, 32
    sTg, sSl, sO, sZ, sY, sS, sFa, sRdy, sLb = sB0, sB1, sSrc, sRb, sWb, sDst, sStr, sN, sD
    P(f"""s_mul_i32 s{sTg}, s{sX}, 3277
s_lshr_b32 s{sTg}, s{sTg}, 16
s_mul_i32 s{sT0}, s{sTg}, 20
s_sub_u32 s{sSl}, s{sX}, s{sT0}
s_mov_b32 s{sT2}, {FL_W}""")
    for k in range(1, 4): P(f"v_add_u32 v{vO[k]}, {4096*k}, v{vL16}")
    wait80(P, sT2, T)
    P(f"""s_lshl_b32 s{sT0}, s{sSl}, 2
s_add_u32 s{sT0}, s{sT0}, s{sW}
s_lshl_b32 s{sT0}, s{sT0}, 16
s_add_u32 s{sT0}, s{sT0}, {WOT_OFF}""")
    for k in range(64):
        if k % 16 == 0 and k: P(f"s_add_u32 s{sT0}, s{sT0}, 16384")
        P(f"buffer_load_dwordx4 {A(4*k,4)}, v{vO[(k//4)%4]}, {wsr}, s{sT0} offen offset:{1024*(k%4)} sc1")
        if k % 32 == 31: P("s_waitcnt vmcnt(0)")
    l = T
    P(f"""s_lshl_b32 s{sO}, s{sTg}, 16
s_lshl_b32 s{sT0}, s{sW}, 14
s_add_u32 s{sO}, s{sO}, s{sT0}
s_add_u32 s{sO}, s{sO}, {O_OFF[0]}
s_lshl_b32 s{sT1}, s{sTg}, 7
s_lshl_b32 s{sZ}, s{sSl}, 11
s_add_u32 s{sZ}, s{sZ}, s{sT1}
s_add_u32 s{sZ}, s{sZ}, {Z_OFF[0]}
s_lshl_b32 s{sY}, s{sSl}, 17
s_add_u32 s{sY}, s{sY}, s{sT1}
s_add_u32 s{sY}, s{sY}, {Y_OFF[0]}
s_lshl_b32 s{sS}, s{sSl}, 7
s_lshl_b32 s{sT1}, s{sTg}, 5
s_add_u32 s{sS}, s{sS}, s{sT1}
s_add_u32 s{sS}, s{sS}, {SSQ_OFF[0]}
s_lshr_b32 s{sFa}, s{sTg}, 1
s_lshl_b32 s{sFa}, s{sFa}, 8
s_lshl_b32 s{sT1}, s{sW}, 5
s_add_u32 s{sFa}, s{sFa}, s{sT1}
s_add_u32 s{sFa}, s{sFa}, {FL_A}
s_mov_b32 s{sProg}, 1
v_lshrrev_b32 v{l}, 4, v{vL16}
v_and_b32 v{l+1}, 8, v{l}
v_cmp_ne_u32 vcc, 0, v{l+1}
v_mov_b32 v{vIdx}, 0x4444
v_mov_b32 v{l+1}, 0xeeee
v_cndmask_b32 v{vIdx}, v{vIdx}, v{l+1}, vcc
v_and_b32 v{l+1}, 7, v{l}
v_lshrrev_b32 v{l+2}, 3, v{l}
v_lshlrev_b32 v{vFl}, 2, v{l+1}
v_mul_u32_u24 v{vRd_}, 144, v{l+2}
v_lshl_add_u32 v{vRd_}, v{l+1}, 4, v{vRd_}
v_and_b32 v{l+3}, 1, v{l}
v_lshlrev_b32 v{l+3}, 3, v{l+3}
v_lshl_add_u32 v{l+3}, v{l+2}, 4, v{l+3}
v_bfe_u32 v{l+4}, v{l}, 1, 2
v_lshl_add_u32 v{vZ}, v{l+4}, 9, v{l+3}
v_lshl_add_u32 v{vY}, v{l+4}, 15, v{l+3}
v_lshlrev_b32 v{vS}, 2, v{l+2}
v_mov_b32 v{l+3}, {OOB}
v_cmp_eq_u32 vcc, 0, v{l+1}
v_cndmask_b32 v{vS}, v{l+3}, v{vS}, vcc
v_add_u32 v{l+1}, s{sSl}, v{l+1}
v_cmp_eq_u32 vcc, 0, v{l+1}
v_cndmask_b32 v{vMk}, 1.0, 0, vcc
v_and_b32 v{vWr}, 15, v{l}
v_bfe_u32 v{l+1}, v{l}, 4, 1
v_mul_u32_u24 v{l+1}, 144, v{l+1}
v_add_u32 v{vWr}, v{vWr}, v{l+1}
v_lshrrev_b32 v{l+1}, 5, v{l}
v_lshl_add_u32 v{vWr}, v{l+1}, 4, v{vWr}
v_lshlrev_b32 v{vWr}, 2, v{vWr}
s_mul_i32 s{sT0}, s{sW}, 1152
v_add_u32 v{vWr}, s{sT0}, v{vWr}
s_mov_b32 s{sLb}, 8192""")
    stamp(P, 4)
    top, poll, pd, nr, ne, out, nosw = (P.lbl(x) for x in 'top poll pd nr ne out nosw'.split())

    def loads():
        P(f"buffer_load_dwordx2 {V(ZR,2)}, v{vZ}, {wsr}, s{sZ} offen sc1")
        for k in range(16):
            P(f"buffer_load_dwordx4 {V(AF+4*k,4)}, v{vO[k//4]}, {wsr}, s{sO} offen offset:{1024*(k%4)} sc1")
        P(f"""s_xor_b32 s{sFa}, s{sFa}, 512
buffer_load_dword v{vF}, v{vFl}, {wsr}, s{sFa} offen sc1""")

    P(f"""{poll}:
buffer_load_dword v{vF}, v{vFl}, {wsr}, s{sFa} offen sc1
v_cmp_gt_u32 vcc, s{sProg}, v{vF}
s_cbranch_vccz {pd}""")
    spin_tail(P, poll, 1)
    P(f"{pd}:")
    loads()
    P(f"{top}:")
    for r in range(0, 8, 2): P(f"v_mov_b64 {V(AC+r,2)}, 0")
    P(f"""s_add_u32 s{sProg}, s{sProg}, 1
s_add_u32 s{sO}, s{sO}, {O_SEG}
s_add_u32 s{sZ}, s{sZ}, {Z_SEG}
s_cmp_eq_u32 s{sProg}, 65
s_cselect_b32 s{sT0}, {O_OFF[1]-O_OFF[0]-64*O_SEG}, 0
s_cselect_b32 s{sT1}, {Z_OFF[1]-Z_OFF[0]-64*Z_SEG}, 0
s_add_u32 s{sO}, s{sO}, s{sT0}
s_add_u32 s{sZ}, s{sZ}, s{sT1}
v_lshlrev_b32 v{RES}, 16, v{ZR}
v_and_b32 v{RES+1}, 0xffff0000, v{ZR}
v_lshlrev_b32 v{RES+2}, 16, v{ZR+1}
v_and_b32 v{RES+3}, 0xffff0000, v{ZR+1}""")
    for k in range(16):
        for ct in range(2):
            P(f"v_smfmac_f32_16x16x64_bf16 {V(AC+4*ct,4)}, {V(AF+4*k,4)}, {A(16*k+8*ct,8)}, v{vIdx}")
    P(f"""v_cmp_gt_u32 vcc, s{sProg}, v{vF}
s_mov_b32 s{sRdy}, 0
s_cbranch_vccnz {nr}
s_mov_b32 s{sRdy}, 1""")
    loads()
    P(f"{nr}:")
    for r in range(4): P(f"v_permlane32_swap_b32 v{AC+r}, v{AC+4+r}")
    for r in range(4): P(f"v_add_f32 v{AC+r}, v{AC+r}, v{AC+4+r}\nds_write_b32 v{vWr}, v{AC+r} offset:{144*r}")
    P(f"""v_add_u32 v{vWr}, s{sLb}, v{vWr}
s_waitcnt lgkmcnt(0)
s_barrier
s_cmp_lg_u32 s{sW}, 0
s_cbranch_scc1 {ne}""")
    for w in range(4): P(f"ds_read_b128 {V(T+4*w,4)}, v{vRd_} offset:{1152*w}")
    P(f"v_add_u32 v{vRd_}, s{sLb}, v{vRd_}")
    for w in range(4):
        for r in range(4): P(f"v_add_f32 v{RES+r}, v{RES+r}, v{T+4*w+r}")
    P(f"""{cvt(T, RES)}
{cvt(T+1, RES+2)}
buffer_store_dwordx2 {V(T,2)}, v{vY}, {wsr}, s{sY} offen sc1
v_mul_f32 v{RES+1}, v{vMk}, v{RES+1}
v_mul_f32 v{RES}, v{RES}, v{RES}
v_fmac_f32 v{RES}, v{RES+1}, v{RES+1}
v_fmac_f32 v{RES}, v{RES+2}, v{RES+2}
v_fmac_f32 v{RES}, v{RES+3}, v{RES+3}
v_add_f32_dpp v{RES}, v{RES}, v{RES} quad_perm:[1,0,3,2] row_mask:0xf bank_mask:0xf
v_add_f32_dpp v{RES}, v{RES}, v{RES} quad_perm:[2,3,0,1] row_mask:0xf bank_mask:0xf
v_add_f32_dpp v{RES}, v{RES}, v{RES} row_half_mirror row_mask:0xf bank_mask:0xf
buffer_store_dword v{RES}, v{vS}, {wsr}, s{sS} offen sc1
s_add_u32 s{sY}, s{sY}, 512
s_add_u32 s{sS}, s{sS}, 2560
s_cmp_eq_u32 s{sProg}, 65
s_cbranch_scc0 {ne}""")
    stamp(P, 5)
    P(f"""s_add_u32 s{sY}, s{sY}, {Y_OFF[1]-Y_OFF[0]-64*512}
s_add_u32 s{sS}, s{sS}, {SSQ_OFF[1]-SSQ_OFF[0]-64*2560}
{ne}:
s_sub_u32 s{sLb}, 0, s{sLb}
s_cmp_eq_u32 s{sRdy}, 1
s_cbranch_scc1 {top}
s_cmp_le_u32 s{sProg}, {64*nlay}
s_cbranch_scc1 {poll}""")
    stamp(P, 6)
    P("s_waitcnt vmcnt(0) lgkmcnt(0)\ns_barrier")
```

```python
from asmlib import *
from layout import *
from worker import *

L_F64, L_TW, L_RS, L_TR = 0, 32768, 57344, 65536
PK, RSG, YR, TT = 8, 12, 16, 20
vY, vS, vRw, vZ, vRe = 30, 31, 24, 25, 26
BA, BB, BC, BD, BE, ST, AC4, FW = 32, 48, 64, 80, 96, 112, 128, 192
F32 = 160
mm = lambda d, a, b, c: f"v_mfma_f32_32x32x16_bf16 {V(d,16)}, {a}, {b}, {c}"


def sincos_frag(P, x, step, mask, inv, o):
    for b in range(4):
        P(f"""v_and_b32 v{TT}, {mask}, v{x}
v_cvt_f32_u32 v{TT}, v{TT}
v_mul_f32 v{TT}, {fl(inv)}, v{TT}
v_sin_f32 v{TT+1}, v{TT}
v_cos_f32 v{TT}, v{TT}
v_add_u32 v{x}, v{step}, v{x}
v_cvt_pk_bf16_f32 v{o+b}, v{TT}, v{TT+1}
v_cvt_pk_bf16_f32 v{o+4+b}, -v{TT+1}, v{TT}""")


def weave(P, ms, vs, per):
    vs = list(vs)
    for m in ms:
        P(m)
        for _ in range(per):
            if vs: P(vs.pop(0))
    for x in vs: P(x)


def f_main(P):
    end, nog = P.lbl('fend'), P.lbl('fnog')
    sY, sS, sZ, sMk, sInv = sRb, sWb, sDst, sN, sStr
    n, h4 = PK, PK + 1
    P(f"""s_cmp_ge_u32 s{sX}, 80
s_cbranch_scc1 {end}
v_bfe_u32 v{n}, v{vL16}, 4, 5
v_lshrrev_b32 v{h4}, 9, v{vL16}
s_lshl_b32 s{sT0}, s{sX}, 2
s_add_u32 s{sT0}, s{sT0}, s{sW}
s_cmp_eq_u32 s{sT0}, 0
s_cselect_b32 s{sMk}, 0xffff, -1
s_cselect_b32 s{sT1}, 0x30000, 0
s_cmov_b32 s{sT0}, 320
v_add_u32 v{vRe}, s{sT1}, v{vL16}
s_cmp_lg_u32 s{sLay}, 0
s_cbranch_scc1 {nog}""")
    karg_srd(P, SA, 64, 2048 * 642)
    karg_srd(P, SB, 72, 2048 * 642)
    P(f"""v_lshl_add_u32 v{TT}, v{h4}, 8, v{n}
v_mul_u32_u24 v{TT}, 642, v{TT}
s_lshl_b32 s{sT0}, s{sT0}, 1
v_add_u32 v{TT+2}, s{sT0}, v{TT}
s_waitcnt lgkmcnt(0)""")
    for t in range(2):
        for r in range(16):
            P(f"""s_mov_b32 s{sT1}, {(32*t + 64*(8*(r//4) + r%4))*642}
buffer_load_ushort v{FW+32*t+r}, v{TT+2}, s[{SA}:{SA+3}], s{sT1} offen
buffer_load_ushort v{FW+32*t+16+r}, v{TT+2}, s[{SB}:{SB+3}], s{sT1} offen""")
    for k in range(4):
        P(f"v_lshl_add_u32 v{PK+2}, v{h4}, 2, {8*k}\nv_mul_u32_u24 v{PK+2}, v{PK+2}, v{n}")
        sincos_frag(P, PK + 2, n, 31, 1 / 32, BA)
        for i in range(8): P(f"v_accvgpr_write_b32 a{F32+8*k+i}, v{BA+i}")
    for r in range(64): P(f"v_lshlrev_b32 v{FW+r}, 16, v{FW+r}\nv_mul_f32 v{FW+r}, {fl(1/2048)}, v{FW+r}")
    P(f"{nog}:")
    P(f"""s_lshl_b32 s{sT0}, s{sW}, 13
v_add_u32 v{PK+4}, s{sT0}, v{vL16}
s_lshl_b32 s{sT0}, s{sW}, 4""")
    for k in range(2):
        for t in range(2):
            P(f"""v_lshl_add_u32 v{PK+2}, v{h4}, 2, s{sT0}
v_add_u32 v{PK+2}, {8*k}, v{PK+2}
v_add_u32 v{PK+3}, {32*t}, v{n}
v_mul_u32_u24 v{PK+2}, v{PK+2}, v{PK+3}""")
            o = BA + 8 * (2 * k + t)
            sincos_frag(P, PK + 2, PK + 3, 63, 1 / 64, o)
            for ri in range(2): P(f"ds_write_b128 v{PK+4}, {V(o+4*ri,4)} offset:{L_F64 + 4096*k + 2048*t + 1024*ri}")
    P(f"""s_lshl_b32 s{sT0}, s{sW}, 11
v_add_u32 v{PK+4}, s{sT0}, v{vL16}
s_lshl_b32 s{sT0}, s{sW}, 3""")
    for tb in range(3):
        o = BC + 8 * tb
        P(f"""v_lshl_add_u32 v{PK+2}, v{h4}, 2, s{sT0}
v_add_u32 v{PK+2}, {32 if tb == 2 else 0}, v{PK+2}
v_add_u32 v{PK+3}, {32 if tb == 1 else 0}, v{n}
v_mul_u32_u24 v{PK+2}, v{PK+2}, v{PK+3}""")
        for b in range(4):
            P(f"""v_cvt_f32_u32 v{TT}, v{PK+2}
v_mul_f32 v{TT}, {fl(1/2048)}, v{TT}
v_add_u32 v{PK+2}, v{PK+3}, v{PK+2}
v_cos_f32 v{o+b}, v{TT}
v_sin_f32 v{o+4+b}, v{TT}""")
        for ri in range(2): P(f"ds_write_b128 v{PK+4}, {V(o+4*ri,4)} offset:{L_TW + 8192*tb + 1024*ri}")
    P(f"""s_lshl_b32 s{sT0}, s{sW}, 2
v_lshl_add_u32 v{vY}, v{n}, 4, s{sT0}
v_lshl_add_u32 v{vY}, v{h4}, 11, v{vY}
v_mul_u32_u24 v{vS}, 2560, v{h4}
v_lshl_add_u32 v{vS}, v{n}, 2, v{vS}
s_lshr_b32 s{sT0}, s{sW}, 1
s_lshl_b32 s{sT0}, s{sT0}, 9
s_and_b32 s{sT1}, s{sW}, 1
s_lshl_b32 s{sT1}, s{sT1}, 3
s_add_u32 s{sT0}, s{sT0}, s{sT1}
v_lshl_add_u32 v{vRw}, v{n}, 4, s{sT0}
v_lshl_add_u32 v{vRw}, v{h4}, 2, v{vRw}
s_mov_b32 s{sT0}, {4*Z_SEG}
v_mul_lo_u32 v{vZ}, v{h4}, s{sT0}
v_lshl_add_u32 v{vZ}, v{n}, 4, v{vZ}
s_mul_i32 s{sY}, s{sLay}, {Y_OFF[1]-Y_OFF[0]}
s_lshl_b32 s{sT0}, s{sX}, 15
s_add_u32 s{sY}, s{sY}, s{sT0}
s_add_u32 s{sY}, s{sY}, {Y_OFF[0]}
s_mul_i32 s{sS}, s{sLay}, {SSQ_OFF[1]-SSQ_OFF[0]}
s_mul_i32 s{sT0}, s{sW}, 5120
s_add_u32 s{sS}, s{sS}, s{sT0}
s_add_u32 s{sS}, s{sS}, {SSQ_OFF[0]}
s_mul_i32 s{sZ}, s{sLay}, {Z_OFF[2]-Z_OFF[1]}
s_lshl_b32 s{sT0}, s{sX}, 9
s_add_u32 s{sZ}, s{sZ}, s{sT0}
s_mul_i32 s{sT0}, s{sW}, {8*Z_SEG}
s_add_u32 s{sZ}, s{sZ}, s{sT0}
s_add_u32 s{sZ}, s{sZ}, {Z_OFF[1]}
s_mov_b32 s{sInv}, {fl(1/640)}
v_mov_b32 v27, {fl(1e-5)}
s_waitcnt vmcnt(0) lgkmcnt(0)
s_barrier""")
    stamp(P, 6)
    SQ_ = list(range(BE, BE + 16)) + list(range(TT, TT + 4))
    yl = lambda b: f"buffer_load_dword v{YR+b}, v{vY}, {wsr}, s{sY} offen offset:{512*b} sc1"
    S1 = [BA, BB, BC, BD]
    for k in range(8):
        pr, prd, ps, psd, py, pyd = (P.lbl(x) for x in 'pr prd ps psd py pyd'.split())
        for j in range(4): P(f"ds_read_b128 {V(ST+4*j,4)}, v{vL16} offset:{L_F64 + 4096*k + 1024*j}")
        P(f"{pr}:\n{yl(2)}\nv_cmp_eq_u32 vcc, -1, v{YR+2}\ns_cbranch_vccz {prd}")
        spin_tail(P, pr, 8)
        P(f"{prd}:\n{ps}:")
        for j in range(20): P(f"buffer_load_dword v{SQ_[j]}, v{vS}, {wsr}, s{sS} offen offset:{128*j} sc1")
        for b in (0, 1, 3): P(yl(b))
        for j in range(1, 20): P(f"v_add_f32 v{BE}, v{BE}, v{SQ_[j]}")
        P(f"v_cmp_u_f32 vcc, v{BE}, v{BE}\nv_fma_f32 v{BE}, v{BE}, s{sInv}, v27\ns_cbranch_vccz {psd}")
        spin_tail(P, ps, 0)
        P(f"""{psd}:
v_rsq_f32 v{BE}, v{BE}
s_add_u32 s{sS}, s{sS}, {8*2560}
ds_write_b32 v{vRw}, v{BE} offset:{L_RS + 1024*(k%2)}
s_branch {pyd}
{py}:""")
        for b in (0, 1, 3): P(yl(b))
        P(f"""s_sub_u32 s{sBud}, s{sBud}, 1
{pyd}:
v_max3_u32 v{TT}, v{YR}, v{YR+1}, v{YR+3}
v_cmp_eq_u32 vcc, -1, v{TT}
s_cmp_gt_i32 s{sBud}, 0
s_cselect_b64 vcc, vcc, 0
s_cbranch_vccnz {py}
s_add_u32 s{sY}, s{sY}, 4096
s_waitcnt lgkmcnt(0)
s_barrier
ds_read_b128 {V(RSG,4)}, v{vL16} offset:{L_RS + 1024*(k%2)}""")
        if k == 7: stamp(P, 7)
        im = AC4 + 32 * (k // 4) + 4 * (k % 4)
        re = im + 16
        for b in range(4): P(f"v_lshlrev_b32 v{re+b}, 16, v{YR+b}\nv_and_b32 v{im+b}, 0xffff0000, v{YR+b}")
        for b in range(4):
            P(f"""v_mul_f32 v{PK+b}, v{RSG+b}, v{re+b}
v_mul_f32 v{RSG+b}, v{RSG+b}, v{im+b}
v_cvt_pk_bf16_f32 v{PK+b}, v{PK+b}, v{RSG+b}
v_and_b32 v{PK+b}, s{sMk}, v{PK+b}""")
        for j in range(4): P(mm(S1[j], V(PK, 4), V(ST + 4 * j, 4), V(S1[j], 16) if k else '0'))

    twq = [(tb, q) for tb in (0, 1, 0, 2) for q in range(4)]
    twn = [0]

    def twread():
        if twn[0] >= len(twq): return []
        tb, q = twq[twn[0]]
        o = ST + 8 * (twn[0] % 2)
        twn[0] += 1
        return [f"ds_read_b128 {V(o+4*ri,4)}, v{vL16} offset:{L_TW + 8192*tb + 2048*q + 1024*ri}" for ri in range(2)]

    used = [0]

    def cmul(a, b, filt=None):
        r = []
        for q in range(4):
            if filt is None:
                c = ST + 8 * (used[0] % 2); s = c + 4; used[0] += 1
            else:
                s = filt + 4 * q; c = s + 16
            for j in range(4):
                x, y, t = a + 4 * q + j, b + 4 * q + j, PK + 2 * (j % 2)
                r += [f"v_mul_f32 v{t}, v{x}, v{c+j}", f"v_mul_f32 v{t+1}, v{y}, v{c+j}", f"v_fmac_f32 v{t}, v{y}, v{s+j}",
                      f"v_fma_f32 v{t+1}, -v{x}, v{s+j}, v{t+1}" if filt is None else f"v_fma_f32 v{t+1}, v{x}, v{s+j}, -v{t+1}",
                      f"v_cvt_pk_bf16_f32 v{x}, v{t}, v{t+1}"]
            if filt is None: r += twread()
        return r

    def dft32(src, dre, dim, dataA):
        r = []
        for k in range(4):
            for ri, d in enumerate((dre, dim)):
                x, f = V(src + 4 * k, 4), A(F32 + 8 * k + 4 * ri, 4)
                r.append(mm(d, x, f, V(d, 16) if k else '0') if dataA else mm(d, f, x, V(d, 16) if k else '0'))
        return r

    for x in twread() + twread(): P(x)
    weave(P, [], cmul(BA, BB), 0)
    weave(P, dft32(BA, BB, BE, False), cmul(BC, BD), 8)
    weave(P, dft32(BC, BD, BA, False), cmul(BB, BE, FW), 8)
    weave(P, dft32(BB, BE, BC, True), cmul(BD, BA, FW + 32), 8)
    weave(P, dft32(BD, BA, BB, True), cmul(BE, BC), 8)
    order = [(k, t, ri) for k in range(4) for t in range(2) for ri in range(2)]
    order += [(k, t, ri) for t in range(2) for k in range(4, 8) for ri in range(2)]
    ring = [BD + 4 * i for i in range(4)] + [BC + 4 * i for i in range(4)]
    rd = lambda i: f"ds_read_b128 {V(ring[i%8],4)}, v{vL16 if order[i][2] else vRe} offset:{L_F64 + 4096*order[i][0] + 2048*order[i][1] + 1024*order[i][2]}"
    for i in range(6): P(rd(i))
    vs = cmul(BA, BB)
    P(f"s_lshl_b32 s{sT0}, s{sW}, 10\nv_add_u32 v{TT}, s{sT0}, v{vL16}\nv_add_u32 v{TT}, {L_TR}, v{TT}")

    def fin(t):
        r = []
        for q in range(4):
            im = AC4 + 32 * t + 4 * q
            r += [f"v_cvt_pk_bf16_f32 v{im+j}, v{im+16+j}, v{im+j}" for j in range(4)]
            r.append(f"ds_write_b128 v{TT}, {V(im,4)} offset:{4096*(4*t+q)}")
        return r
    for i, (k, t, ri) in enumerate(order):
        d = AC4 + 32 * t + 16 * ri
        P(mm(d, V(ring[i % 8], 4), V((BE if k < 4 else BA) + 4 * (k % 4), 4), V(d, 16)))
        if i + 6 < 32: P(rd(i + 6))
        if i == 25: vs = fin(0)
        for _ in range(6):
            if vs: P(vs.pop(0))
        if i == 15: assert not vs
    for x in vs + fin(1): P(x)
    P(f"""s_lshl_b32 s{sT0}, s{sW}, 12
s_add_u32 s{sT0}, s{sT0}, {L_TR}
v_add_u32 v{TT}, s{sT0}, v{vL16}
s_waitcnt lgkmcnt(0)
s_barrier""")
    for t in range(2):
        for w in range(4): P(f"ds_read_b128 {V(BA+16*t+4*w,4)}, v{TT} offset:{16384*t + 1024*w}")
    for t in range(2):
        o = BA + 16 * t
        for b in range(4):
            for w in range(b + 1, 4): P(f"v_swap_b32 v{o+4*b+w}, v{o+4*w+b}")
            P(f"buffer_store_dwordx4 {V(o+4*b,4)}, v{vZ}, {wsr}, s{sZ} offen sc1\ns_add_u32 s{sZ}, s{sZ}, {Z_SEG if b < 3 else 29*Z_SEG}")
    P(f"""s_lshl_b32 s{sT2}, s{sLay}, 13
s_lshl_b32 s{sT0}, s{sX}, 6
s_add_u32 s{sT2}, s{sT2}, s{sT0}
s_add_u32 s{sT2}, s{sT2}, {FL_Z[1]}""")
    stamp(P, 8)
    signal80(P, sT2, PK)
    stamp(P, 9)
    P(f"{end}:")
```

```python
MB = 1 << 20
WS_SIZE = 256 * MB

KV_OFF = [0 * MB, 40 * MB]
KV_SEG = 32 * 4 * 4096
KM_OFF = [80 * MB, 96 * MB]
KM_SEG = 32 * 4 * 2048
MEMH_OFF = [112 * MB, 113 * MB]
P_OFF = 114 * MB
P_SLOT = 80 * 4096
TS_OFF = 115 * MB
TS_WAVE = 16 * 2048
Q_OFF = [120 * MB, 136 * MB]
Q_SEG = 32 * 4 * 2048
O_OFF = [152 * MB, 169 * MB]
O_SEG = 4 * 65536
Z_OFF = [186 * MB, 189 * MB, 192 * MB]
Z_SEG = 40960
Y_OFF = [196 * MB, 199 * MB]
SSQ_OFF = [202 * MB, 203 * MB]
R1_OFF = 204 * MB
R2_OFF = 205 * MB
WOT_OFF = 206 * MB
FL_OFF = 212 * MB
FL_Z = [FL_OFF + 8192 * k for k in range(3)]
FL_W = FL_OFF + 8192 * 3
FL_P = FL_OFF + 8192 * 4
FL_A = FL_OFF + 8192 * 5
FL_SIZE = 65536
PROF_OFF = 250 * MB
D_TICK = 0
D_INIT1, D_INIT2, D_TEAM = 128, 192, 160
```

```python
from asmlib import *
from layout import *

WS = 4
SQ, SK, SV, SO = 8, 12, 16, 20
SM0 = 24
DBG = 28
sH, sStep, sBud = 30, 31, 32
sMem, sMem2, sKV, sPst, sPrd, sPub, sTS, sKM = 33, 34, 35, 36, 37, 38, 39, 40
sT0 = 41
mHi8, mOdd, mSel = 42, 44, 46
sCexp, sPx, sT1, sT2, sPoi, sRst = 54, 55, 56, 57, 58, 59
sTSb = 60
sTm = 70
sW = 3
sSeen = 68

vL16, vIdx, vSelT, vB2, vPst, vPub, vSm = 0, 1, 2, 4, 5, 6, 7
T, AB0, AB1, AB2 = 8, 12, 16, 20
QA, KA, VA, X, Y, S1, S2 = 24, 32, 40, 48, 56, 64, 72
NWORK = 80

L_FRAG = 0
L_SX = 10240
L_SM = 14336
L_O = 10240

OWN = [[0, 1, 2], [3, 4, 5], [6, 7, 8], [9, 0, 1]]
OWNW = [3, 3, 3, 1]


def order(w):
    o = list(OWN[w])
    t = o[-1]
    while len(o) < 10:
        t = (t + 1) % 10
        if t not in o: o.append(t)
    return o


STREAM = [('Q', 0, 0), ('Q', 0, 1), ('Q', 1, 0), ('Q', 1, 1), ('Q', 2, 0), ('K', 6, 0), ('O', 2, 3), ('O', 4, 3)]
LDST = [('K', 1, 1), ('K', 2, 1), ('Q', 4, 1), ('Q', 6, 0), ('Q', 7, 1), ('Q', 9, 0),
        ('K', 8, 0), ('K', 7, 1), ('K', 5, 1), ('K', 4, 1),
        ('V', 5, 1), ('V', 7, 1), ('V', 9, 1), ('V', 1, 1),
        ('O', 0, 0), ('O', 1, 0), ('O', 0, 3), ('O', 1, 3)]


def all_tiles():
    r = [(m, i, c) for m in 'QKV' for i in range(10) for c in range(2)]
    r += [('O', p, k) for p in range(5) for k in range(4)]
    return r


def hb_of(w, tile):
    m, i, c = tile
    if m == 'O': return ('O', i, (w + c) % 4)
    return (m, order(w)[i], c)


class Place:
    def __init__(self):
        tiles = all_tiles()
        res = [t for t in tiles if t not in STREAM and t not in LDST]
        slots = [('a', 8 * k) for k in range(32)] + [('v', b) for b in range(NWORK, 256, 8)]
        assert len(res) == len(slots), (len(res), len(slots))
        self.reg = dict(zip(res, slots))
        hbs = [hb_of(0, t) for t in tiles]
        streamed = {hb_of(w, t) for w in range(4) for t in STREAM}
        cand = [h for h in hbs if h not in streamed]
        cnt = lambda h: sum(1 for w in range(4) for t in LDST if hb_of(w, t) == h)
        cand.sort(key=lambda h: -cnt(h))
        self.E = cand[:18]
        self.seq = [h for h in hbs if h not in self.E] + self.E
        self.inv = [{hb_of(w, t): t for t in tiles} for w in range(4)]
        self.park = []
        self.lidx = []
        for w in range(4):
            early = [t for t in LDST if hb_of(w, t) not in self.E]
            late = [self.inv[w][h] for h in self.E if self.inv[w][h] not in LDST]
            assert len(early) == len(late)
            pk = dict(zip(early, late))
            self.park.append(pk)
            rev = {v: k for k, v in pk.items()}
            li = {}
            for k, h in enumerate(self.E):
                t = self.inv[w][h]
                li[t if t in LDST else rev[t]] = k
            self.lidx.append(li)

    def lds_addr(self, w, idx):
        b, k = divmod(idx, 9)
        base = 16384 + 18432 * w if b == 0 else 90112 + 18432 * [2, 3, 0, 1][w]
        return base + 2048 * k

    @staticmethod
    def b2(w):
        return [98304, 98304, 65536, 65536][w]

    def lds_ref(self, w, addr):
        if addr < 65536: return vL16, addr
        o = addr - self.b2(w)
        assert 0 <= o < 65536
        return vB2, o


PL = Place()


def srd(P, d, ptr, nbytes):
    P(f"s_mov_b32 s{d}, s{ptr}\ns_mov_b32 s{d+1}, s{ptr+1}\ns_mov_b32 s{d+2}, {nbytes}\ns_mov_b32 s{d+3}, 0x20000")


def entry(P):
    P(f"""
s_load_dwordx2 s[72:73], s[0:1], 8
s_load_dwordx4 s[76:79], s[0:1], 16
s_load_dwordx4 s[80:83], s[0:1], 32
s_load_dwordx2 s[{DBG}:{DBG+1}], s[0:1], 88
s_load_dwordx2 s[74:75], s[0:1], 96
v_lshrrev_b32 v1, 6, v0
v_and_b32 v0, 63, v0
v_readfirstlane_b32 s{sW}, v1
s_waitcnt lgkmcnt(0)
""")
    srd(P, WS, 74, WS_SIZE)
    srd(P, SQ, 76, 640 * 8192)
    srd(P, SK, 78, 640 * 8192)
    srd(P, SV, 80, 640 * 8192)
    srd(P, SO, 82, 640 * 8192)
    srd(P, SM0, 72, 10240)
    P(f"s_mov_b32 s{sBud}, 400000")


def form_team(P):
    skip, spin, got, no, wr = (P.lbl(x) for x in ('fskip', 'fspin', 'fgot', 'fno', 'fwr'))
    P(f"""
s_cmp_lg_u32 s{sW}, 0
s_cbranch_scc1 {skip}
s_getreg_b32 s{sT0}, hwreg(HW_REG_XCC_ID, 0, 4)
s_mov_b64 exec, 1
s_lshl_b32 s{sT1}, s{sT0}, 2
v_mov_b32 v1, s{sT1}
v_mov_b32 v2, 1
global_atomic_add v3, v1, v2, s[{DBG}:{DBG+1}] sc0 sc1
s_add_u32 s{sT0}, s{sT0}, 1
v_mov_b32 v1, 64
v_readfirstlane_b32 s{sH}, v3
s_cmp_gt_u32 s{sH}, 31
s_cbranch_scc1 {no}
s_cmp_lg_u32 s{sH}, 31
s_cbranch_scc1 {spin}
v_mov_b32 v4, s{sT0}
v_mov_b32 v5, 0
global_atomic_cmpswap v3, v1, v[4:5], s[{DBG}:{DBG+1}] sc0 sc1
s_waitcnt vmcnt(0)
{spin}:
global_load_dword v3, v1, s[{DBG}:{DBG+1}] sc1
v_readfirstlane_b32 s{sT1}, v3
s_cmp_lg_u32 s{sT1}, 0
s_cbranch_scc1 {got}
s_sub_u32 s{sBud}, s{sBud}, 1
s_cmp_gt_i32 s{sBud}, 0
s_cbranch_scc1 {spin}
{got}:
s_cmp_eq_u32 s{sT1}, s{sT0}
s_cbranch_scc1 {wr}
{no}:
s_mov_b32 s{sH}, -1
{wr}:
v_mov_b32 v1, 0
v_mov_b32 v2, s{sH}
ds_write_b32 v1, v2
s_mov_b64 exec, -1
s_waitcnt lgkmcnt(0)
{skip}:
s_barrier
v_mov_b32 v1, 0
ds_read_b32 v2, v1
v_readfirstlane_b32 s{sH}, v2
s_barrier
""")


def regs(slot, off=0, n=8):
    return rr(slot[0], slot[1] + off, n)


def prologue(P, w):
    vDq, vDo, t1, t2, t3 = 8, 9, 10, 11, 12
    trQ, trO = [1, 2, 3], [5, 6, 7]
    TMP = 16
    P(f"""
v_lshrrev_b32 v{t1}, 3, v0
v_lshlrev_b32 v{vDq}, 13, v{t1}
v_bfe_u32 v{t1}, v0, 1, 2
v_lshrrev_b32 v{t2}, 4, v0
v_xor_b32 v{t1}, v{t1}, v{t2}
v_lshl_add_u32 v{vDq}, v{t1}, 5, v{vDq}
v_and_b32 v{t3}, 1, v0
v_lshl_add_u32 v{vDq}, v{t3}, 4, v{vDq}
v_mul_u32_u24 v{vDo}, 1280, v{t2}
v_bfe_u32 v{t1}, v0, 1, 3
v_and_b32 v{t2}, 1, v{t2}
v_lshlrev_b32 v{t2}, 1, v{t2}
v_xor_b32 v{t1}, v{t1}, v{t2}
v_xor_b32 v{t1}, {4*(w//2)}, v{t1}
v_lshl_add_u32 v{vDo}, v{t1}, 5, v{vDo}
v_lshl_add_u32 v{vDo}, v{t3}, 4, v{vDo}
""")
    P(f"""
v_bfe_u32 v{t1}, v0, 5, 1
v_lshlrev_b32 v{t1}, 4, v{t1}
v_bfe_u32 v{t2}, v0, 4, 1
v_lshl_add_u32 v{t1}, v{t2}, 1, v{t1}
v_bfe_u32 v{t2}, v0, 2, 1
v_lshl_add_u32 v{t1}, v{t2}, 2, v{t1}
v_bfe_u32 v{t2}, v0, 3, 1
v_add_u32 v{t1}, v{t2}, v{t1}
v_bfe_u32 v{t2}, v{t1}, 1, 2
v_xor_b32 v{t2}, {w}, v{t2}
v_lshlrev_b32 v{t2}, 5, v{t2}
v_lshl_add_u32 v{trQ[0]}, v{t1}, 7, v{t2}
v_and_b32 v{t3}, 3, v0
v_lshl_add_u32 v{trQ[0]}, v{t3}, 3, v{trQ[0]}
v_add_u32 v{trQ[1]}, 0x10000, v{trQ[0]}
v_add_u32 v{trQ[2]}, 0x20000, v{trQ[0]}
""")
    P(f"""
v_bfe_u32 v{t1}, v0, 4, 1
v_lshlrev_b32 v{t2}, 4, v{t1}
v_lshlrev_b32 v{t1}, 2, v{t1}
v_bfe_u32 v{trO[1]}, v0, 5, 1
v_lshl_add_u32 v{t2}, v{trO[1]}, 2, v{t2}
v_bfe_u32 v{trO[1]}, v0, 2, 1
v_add_u32 v{t2}, v{trO[1]}, v{t2}
v_lshl_add_u32 v{t1}, v{trO[1]}, 1, v{t1}
v_bfe_u32 v{trO[1]}, v0, 3, 1
v_add_u32 v{trO[1]}, {2*w}, v{trO[1]}
v_xor_b32 v{t1}, v{t1}, v{trO[1]}
v_lshlrev_b32 v{t1}, 5, v{t1}
v_lshl_add_u32 v{trO[0]}, v{t2}, 8, v{t1}
v_lshl_add_u32 v{trO[0]}, v{t3}, 3, v{trO[0]}
v_add_u32 v{trO[1]}, 0x10000, v{trO[0]}
v_add_u32 v{trO[2]}, 0x20000, v{trO[0]}
v_lshlrev_b32 v{vL16}, 4, v0
v_add_u32 v{vB2}, {PL.b2(w)}, v{vL16}
s_lshl_b32 s{sT1}, s{sH}, 8
s_mul_i32 s{sT2}, s{sH}, 163840
s_mul_i32 s{sTS}, s{sH}, {4*TS_WAVE}
s_add_u32 s{sTS}, s{sTS}, {TS_OFF + w*TS_WAVE}
""")
    for k in range(8):
        P(f"s_add_u32 s{sTSb+k}, s{sTS}, {4096*k}")
    vq = []

    def dma(n):
        hb = PL.seq[n]
        reg = (n % 20) * 8192
        for i in (2 * w, 2 * w + 1):
            P(f"s_mov_b32 m0, {reg + 1024*i}")
            if hb[0] == 'O':
                el = 4 * i
                e = 16 * hb[2] + el if el < 16 else 64 + 16 * hb[2] + el - 16
                P(f"s_add_u32 s{sT0}, s{sT2}, {e*1280 + hb[1]*256}")
                P(f"buffer_load_dwordx4 v{vDo}, s[{SO}:{SO+3}], s{sT0} offen lds")
            else:
                sr = {'Q': SQ, 'K': SK, 'V': SV}[hb[0]]
                P(f"s_add_u32 s{sT0}, s{sT1}, {(64*hb[1] + 8*i)*8192 + hb[2]*128}")
                P(f"buffer_load_dwordx4 v{vDq}, s[{sr}:{sr+3}], s{sT0} offen lds")
            vq.append(n)

    def wait_hb(n):
        last = max(i for i, x in enumerate(vq) if x == n)
        k = len(vq) - 1 - last
        P(f"s_waitcnt vmcnt({k})")
        del vq[:last + 1]

    def trread(n, dst):
        hb = PL.seq[n]
        reg = (n % 20) * 8192
        for rho in range(4):
            half, hi = divmod(rho, 2)
            o = reg + ((8 * half + 2 * hi) * 256 if hb[0] == 'O' else (32 * half + 8 * hi) * 128)
            a = (trO if hb[0] == 'O' else trQ)[o >> 16]
            P(f"ds_read_b64_tr_b16 {regs(dst, 2*rho, 2)}, v{a} offset:{o & 0xffff}")

    G = 4
    for n in range(16): dma(n)
    for g in range(16):
        lo, hi_ = G * g, min(G * g + G, 62)
        wait_hb(hi_ - 1)
        P("s_barrier")
        for n in range(G * g + 16, G * g + 20): dma(n)
        st = []
        for n in range(lo, hi_):
            t = PL.inv[w][PL.seq[n]]
            if t in STREAM:
                d = ('v', TMP + 8 * (n - lo))
                st.append((d, STREAM.index(t)))
            elif t in LDST:
                d = PL.reg[PL.park[w][t]]
            else:
                d = PL.reg[t]
            trread(n, d)
        P("s_waitcnt lgkmcnt(0)")
        for d, k in st:
            for hh in range(2):
                o = 2048 * k + 1024 * hh
                P(f"buffer_store_dwordx4 {regs(d, 4*hh, 4)}, v{vL16}, s[{WS}:{WS+3}], s{sTSb + o//4096} offen offset:{o%4096}")
                vq.append(-1)
    rev = {v: k for k, v in PL.park[w].items()}
    for b in range(2):
        wait_hb(62 + 9 * b + 8)
        P("s_barrier")
        for k in range(9): trread(62 + 9 * b + k, ('v', 8 + 8 * k))
        P("s_waitcnt lgkmcnt(0)\ns_barrier")
        mv = []
        for k in range(9):
            t = PL.inv[w][PL.seq[62 + 9 * b + k]]
            src = ('v', 8 + 8 * k)
            if t not in LDST:
                mv.append((src, PL.reg[t]))
                src = PL.reg[t]
            for hh in range(2):
                a, o = PL.lds_ref(w, PL.lds_addr(w, 9 * b + k) + 1024 * hh)
                P(f"ds_write_b128 v{a}, {regs(src, 4*hh, 4)} offset:{o}")
        P("s_waitcnt lgkmcnt(0)")
        for s_, d in mv:
            for i in range(8):
                if d[0] == 'a': P(f"v_accvgpr_write_b32 a{d[1]+i}, v{s_[1]+i}")
                else: P(f"v_mov_b32 v{d[1]+i}, v{s_[1]+i}")
    l, a_, b_ = 8, 9, 10
    P(f"""
v_lshrrev_b32 v{l}, 4, v{vL16}
v_and_b32 v{a_}, 8, v{l}
v_cmp_ne_u32 s[{mHi8}:{mHi8+1}], 0, v{a_}
v_and_b32 v{a_}, 1, v{l}
v_cmp_ne_u32 s[{mOdd}:{mOdd+1}], 0, v{a_}
v_bfe_u32 v{a_}, v{l}, 1, 2
""")
    for r in range(4): P(f"v_cmp_eq_u32 s[{mSel+2*r}:{mSel+2*r+1}], {r}, v{a_}")
    P(f"""
v_mov_b32 v{vIdx}, 0x4444
v_mov_b32 v{b_}, 0xeeee
v_cndmask_b32 v{vIdx}, v{vIdx}, v{b_}, s[{mHi8}:{mHi8+1}]
v_mov_b32 v{b_}, 0x3f80
v_cndmask_b32 v{b_}, v{b_}, 1.0, s[{mOdd}:{mOdd+1}]
v_bfe_u32 v11, v{l}, 4, 1
v_lshlrev_b32 v11, 1, v11
v_sub_u32 v{a_}, v{a_}, v11
v_cmp_eq_u32 vcc, 0, v{a_}
v_cndmask_b32 v{vSelT}, 0, v{b_}, vcc
v_cmp_eq_u32 vcc, 1, v{a_}
v_cndmask_b32 v{vSelT+1}, 0, v{b_}, vcc
v_lshrrev_b32 v{a_}, 4, v{l}
v_and_b32 v{b_}, 15, v{l}
v_lshlrev_b32 v{b_}, 3, v{b_}
v_lshl_add_u32 v{vPst}, v{a_}, 12, v{b_}
v_lshlrev_b32 v{vPub}, 2, v{a_}
v_and_b32 v{b_}, 3, v{l}
v_lshl_add_u32 v{vPub}, v{b_}, 4, v{vPub}
v_bfe_u32 v{b_}, v{l}, 2, 1
v_lshl_add_u32 v{vPub}, v{b_}, 7, v{vPub}
v_and_b32 v{vSm}, 511, v{vL16}
s_mov_b32 s{sCexp}, 0x{int.from_bytes(__import__('struct').pack('<f', 128**-0.5*1.4426950408889634), 'little'):08x}
""")


def ts_load(k, dst):
    r = []
    for hh in range(2):
        o = 2048 * k + 1024 * hh
        r.append(f"buffer_load_dwordx4 {V(dst+4*hh,4)}, v{vL16}, s[{WS}:{WS+3}], s{sTSb + o//4096} offen offset:{o%4096}")
    return r


def layer_init(P, w, layer, bar_target):
    nored = P.lbl('nored')
    o = OWN[w]
    P(f"""
s_mov_b32 s{sStep}, 0
s_mov_b32 s{sMem}, {MEMH_OFF[layer] + o[0]*1024}
s_mov_b32 s{sMem2}, {MEMH_OFF[layer]}
s_lshl_b32 s{sKV}, s{sH}, 14
s_add_u32 s{sKV}, s{sKV}, {KV_OFF[layer] + w*4096}
s_lshl_b32 s{sKM}, s{sH}, 13
s_add_u32 s{sKM}, s{sKM}, {KM_OFF[layer] + w*2048}
s_lshl_b32 s{sPst}, s{sH}, 7
s_add_u32 s{sPst}, s{sPst}, {P_OFF + w*16384}
s_mov_b32 s{sPx}, {P_SLOT}
""")
    if w < 3:
        if w == 2:
            P(f"s_cmp_ge_u32 s{sH}, 16\ns_cbranch_scc1 {nored}")
        P(f"""
s_add_u32 s{sT0}, s{sH}, {32*w}
s_lshl_b32 s{sPrd}, s{sT0}, 12
s_add_u32 s{sPrd}, s{sPrd}, {P_OFF}
s_add_u32 s{sRst}, s{sPrd}, {P_SLOT}
s_lshr_b32 s{sT1}, s{sT0}, 1
s_and_b32 s{sT0}, s{sT0}, 1
s_lshl_b32 s{sPub}, s{sT1}, 8
s_lshl_b32 s{sT2}, s{sT0}, 6
s_add_u32 s{sPub}, s{sPub}, s{sT2}
s_add_u32 s{sPub}, s{sPub}, {MEMH_OFF[layer]}
s_mul_i32 s{sT0}, s{sT0}, 5120
s_lshl_b32 s{sT1}, s{sT1}, 5
s_add_u32 s{sT0}, s{sT0}, s{sT1}
v_lshrrev_b32 v8, 4, v{vL16}
v_and_b32 v9, 3, v8
v_mul_u32_u24 v9, 1280, v9
v_bfe_u32 v10, v8, 2, 1
v_lshl_add_u32 v9, v10, 1, v9
v_bfe_u32 v10, v8, 4, 1
v_lshl_add_u32 v9, v10, 4, v9
v_bfe_u32 v10, v8, 5, 1
v_lshl_add_u32 v9, v10, 2, v9
buffer_load_ushort v10, v9, s[{SM0}:{SM0+3}], s{sT0} offen
buffer_load_ushort v11, v9, s[{SM0}:{SM0+3}], s{sT0} offen offset:8
v_mov_b64 v[12:13], -1
v_mov_b64 v[14:15], -1
v_lshl_or_b32 v10, v11, 16, v10
buffer_store_dword v10, v{vPub}, s[{WS}:{WS+3}], s{sPub} offen
s_add_u32 s{sPub}, s{sPub}, 10240
buffer_store_dword v12, v{vPub}, s[{WS}:{WS+3}], s{sPub} offen
s_add_u32 s{sPoi}, s{sPub}, 10240
""")
        for k in range(4):
            P(f"buffer_store_dwordx4 v[12:15], v{vL16}, s[{WS}:{WS+3}], s{sPrd} offen offset:{1024*k}")
        P(f"{nored}:")
    P("s_waitcnt vmcnt(0)\ns_barrier")
    if w == 0:
        sp = P.lbl('tb')
        dn = P.lbl('tbd')
        P(f"""
s_mov_b64 exec, 1
v_mov_b32 v8, {D_TEAM}
v_mov_b32 v9, 1
global_atomic_add v8, v9, s[{DBG}:{DBG+1}] sc1
{sp}:
global_load_dword v9, v8, s[{DBG}:{DBG+1}] sc1
v_readfirstlane_b32 s{sT0}, v9
s_cmp_ge_u32 s{sT0}, {bar_target}
s_cbranch_scc1 {dn}
s_sub_u32 s{sBud}, s{sBud}, 1
s_cmp_gt_i32 s{sBud}, 0
s_cbranch_scc1 {sp}
{dn}:
s_mov_b64 exec, -1
""")
    P("s_barrier")
    for k, d in enumerate([VA, X, S1, S2, Y]):
        for x in ts_load(k, d): P(x)
    for r in range(QA, QA + 16, 2): P(f"v_mov_b64 {V(r,2)}, 0")


class Seq:
    def __init__(self, P):
        self.P = P
        self.items = []
        self.memq = []
        self.valq = []

    def raw(self, text):
        for ln in text.strip().split('\n'):
            if ln.strip(): self.items.append(('i', ln.strip()))

    def m(self, text, mem=1, val=1, post=''):
        self.items.append(('m', text))
        self.pend = (mem, val, post)

    def fill(self):
        mem, val, post = self.pend
        for _ in range(mem):
            if self.memq: self.raw(self.memq.pop(0))
        for _ in range(val):
            if self.valq: self.raw(self.valq.pop(0))
        self.raw(post)

    def flush(self):
        while self.memq: self.raw(self.memq.pop(0))
        while self.valq: self.raw(self.valq.pop(0))

    def emit(self):
        it = self.items
        for k, (kind, text) in enumerate(it):
            self.P(text)
            if kind == 'm':
                j = k + 1
                between = []
                while j < len(it) and it[j][0] != 'm':
                    between.append(it[j][1]); j += 1
                if j < len(it) and len(between) <= 2 and not any(b.startswith(('s_barrier', 's_cbranch', 's_waitcnt')) or b.endswith(':') for b in between):
                    nx = Ins(it[j][1])
                    wr = set(r for b in between for r in Ins(b).dst)
                    ops = [o for o in nx.ops[1:3] if not (set(parse_reg(o)) & wr)]
                    if ops: self.P('@need ' + ', '.join(ops))


def step_loop(P, w, layer, prof=None, chk=False):
    od = order(w)
    top, poll2, retry2, done = (P.lbl(x) for x in ('top', 'poll2', 'retry2', 'done'))
    poll1, retry1, nored, nored2 = (P.lbl(x) for x in ('poll1', 'retry1', 'nored', 'nored2'))
    q = Seq(P)
    wsr = f"s[{WS}:{WS+3}]"

    def probe(name):
        if prof == name: q.raw(f"@raw s_memtime s[{sTm+2}:{sTm+3}]")

    slot_of = dict(zip(STREAM, [VA, X, S1, S2, Y, VA, X, Y]))
    ldsq = list(LDST)
    stage = {}

    def stage_next(sl):
        if not ldsq: return
        t = ldsq.pop(0)
        stage[t] = sl
        for hh in range(2):
            a, o = PL.lds_ref(w, PL.lds_addr(w, PL.lidx[w][t]) + 1024 * hh)
            q.memq.append(f"ds_read_b128 {V(sl+4*hh,4)}, v{a} offset:{o}")

    def sm(tile, acc, a, **kw):
        if tile in slot_of: b = V(slot_of[tile], 8); sl = slot_of[tile]
        elif tile in LDST: b = V(stage[tile], 8); sl = stage[tile]
        else: b = regs(PL.reg[tile]); sl = None
        q.m(f"v_smfmac_f32_16x16x64_bf16 {V(acc,4)}, {V(a,4)}, {b}, v{vIdx}", **kw)
        return sl

    def frag(i, buf):
        return f"ds_read_b128 {V(buf,4)}, v{vL16} offset:{L_FRAG + od[i]*1024}"

    cvt = lambda d, a: f"v_cvt_pk_bf16_f32 v{d}, v{a}, v{a+1}"
    ACC = {'Q': QA, 'K': KA, 'V': VA}
    fb = {0: AB0, 1: AB1, 2: AB2}

    def qkv(m, i, c, after=None, **kw):
        sl = sm((m, i, c), ACC[m] + 4 * c, fb[i], **kw)
        if after: after()
        if sl in (S1, S2): stage_next(sl)
        q.fill()

    q.raw(f"{top}:")
    if chk:
        ck, cd = P.lbl('ck'), P.lbl('cd')
        q.raw(f"""s_add_u32 s{sT0}, s{sStep}, {64*layer}
s_cmp_gt_u32 s{sSeen}, s{sT0}
s_cbranch_scc1 {cd}
s_lshl_b32 s{sT1}, s{sH}, 6
s_add_u32 s{sT1}, s{sT1}, {FL_P}
{ck}:
buffer_load_dwordx2 {V(T,2)}, off, {wsr}, s{sT1} sc1
v_min_u32 v{T}, v{T}, v{T+1}
v_readfirstlane_b32 s{sSeen}, v{T}
s_cmp_gt_u32 s{sSeen}, s{sT0}
s_cbranch_scc1 {cd}
s_sub_u32 s{sBud}, s{sBud}, 1
s_cmp_gt_i32 s{sBud}, 0
s_cbranch_scc1 {ck}
{cd}:""")
    q.raw(f"{poll2}:")
    for k, t in enumerate(OWN[w]):
        if t >= OWN[w][0]: so, io = sMem, (t - OWN[w][0]) * 1024
        else: so, io = sMem2, t * 1024
        q.raw(f"buffer_load_dwordx4 {V(AB0+4*k,4)}, v{vL16}, {wsr}, s{so} offen offset:{io} sc1")
    q.raw(f"""
s_waitcnt vmcnt(2)
v_max3_u32 v{T}, v{AB0}, v{AB0+1}, v{AB0+2}
v_max_u32 v{T}, v{T}, v{AB0+3}
s_waitcnt vmcnt(1)
v_max3_u32 v{T}, v{T}, v{AB1}, v{AB1+1}
v_max3_u32 v{T}, v{T}, v{AB1+2}, v{AB1+3}
s_waitcnt vmcnt(0)
v_max3_u32 v{T}, v{T}, v{AB2}, v{AB2+1}
v_max3_u32 v{T}, v{T}, v{AB2+2}, v{AB2+3}
v_cmp_eq_u32 vcc, -1, v{T}
s_cbranch_vccnz {retry2}
{poll2}_ok:
""")
    if prof:
        q.raw(f"""@raw s_memtime s[{sTm}:{sTm+1}]""")
    wr = [f"ds_write_b128 v{vL16}, {V(AB0+4*k,4)} offset:{L_FRAG + OWN[w][k]*1024}" for k in range(OWNW[w])]
    q.raw(wr[0])
    q.memq += wr[1:]
    kv = lambda k, d: f"buffer_load_dwordx4 {V(d,4)}, v{vL16}, {wsr}, s{sKV} offen offset:{1024*k} sc1"
    qkv('Q', 1, 0)
    qkv('Q', 1, 1)
    qkv('Q', 0, 0)
    qkv('Q', 0, 1)
    qkv('Q', 2, 0)
    qkv('Q', 2, 1)
    q.memq += ts_load(5, VA)
    qkv('K', 0, 0)
    nd = 4
    qkv('K', 0, 1, post=f"s_waitcnt lgkmcnt({nd})\ns_barrier\n" + frag(3, T))
    probe('bar1')
    fb[3] = T; fb[4] = AB0
    q.memq += [frag(4, AB0), kv(0, X), kv(1, X + 4)]
    qkv('K', 1, 0)
    qkv('K', 1, 1, after=lambda: q.memq.insert(0, frag(5, AB1)), mem=2)
    fb[5] = AB1
    qkv('K', 2, 0, mem=2)
    qkv('K', 2, 1, after=lambda: q.memq.append(frag(6, AB2)), mem=2)
    fb[6] = AB2
    for i in range(3, 10):
        qkv('Q', i, 0)
        if i + 4 < 10:
            qkv('Q', i, 1, after=lambda: q.memq.insert(0, frag(i + 4, fb[i])))
            fb[i + 4] = fb[i]
        else:
            qkv('Q', i, 1)
        if i == 4: q.memq += [kv(2, Y), kv(3, Y + 4)]
    probe('qend')
    tm = lambda d, a: f"v_mfma_f32_16x16x16_bf16 {V(d,4)}, {V(a,2)}, {V(vSelT,2)}, 0"
    qkv('K', 9, 0, val=0)
    q.valq += [cvt(QA, QA), cvt(QA + 1, QA + 2), cvt(QA + 4, QA + 4), cvt(QA + 5, QA + 6)]
    qkv('K', 9, 1, after=lambda: q.memq.append(frag(5, AB1)))
    fb[5] = AB1
    qkv('K', 8, 0)
    qkv('K', 8, 1, after=lambda: q.memq.append(frag(4, AB0)))
    fb[4] = AB0
    q.m(tm(QA, QA)); q.fill()
    qkv('K', 7, 0)
    q.m(tm(QA + 4, QA + 4)); q.fill()
    q.valq += [cvt(QA, QA), cvt(QA + 1, QA + 2), cvt(QA + 2, QA + 4), cvt(QA + 3, QA + 6)]
    qkv('K', 7, 1)
    qkv('K', 6, 0)
    qkv('K', 6, 1, after=lambda: q.memq.append(frag(3, AB2)), val=2)
    fb[3] = AB2
    if w < 3:
        q.valq += [f"v_mov_b64 {V(VA,2)}, -1", f"v_mov_b64 {V(VA+2,2)}, -1"]
    qkv('K', 5, 0)
    mm = lambda d, a, b, c='0': f"v_mfma_f32_16x16x32_bf16 {V(d,4)}, {V(a,4)}, {V(b,4)}, {c}"
    q.m(mm(QA + 4, X, QA)); q.fill()
    q.m(mm(T, X + 4, QA)); q.fill()
    if w < 3:
        if w == 2: q.raw(f"s_cmp_ge_u32 s{sH}, 16\ns_cbranch_scc1 {nored2}")
        rst = [f"buffer_store_dwordx4 {V(VA,4)}, v{vL16}, {wsr}, s{sRst} offen offset:{1024*k}" for k in range(4)]
        rst.append(f"buffer_store_dword v{VA}, v{vPub}, {wsr}, s{sPoi} offen")
        q.raw('\n'.join(rst))
        if w == 2: q.raw(f"{nored2}:")
    q.valq += [f"v_mov_b64 {V(VA+4,2)}, 0", f"v_mov_b64 {V(VA+6,2)}, 0"]
    qkv('K', 5, 1)
    qkv('K', 4, 0)
    q.valq += [f"v_cndmask_b32 v{QA+4+r}, v{QA+4+r}, v{T+r}, s[{mHi8}:{mHi8+1}]" for r in range(4)]
    qkv('K', 4, 1, val=2)
    qkv('K', 3, 0, val=2)
    q.memq.insert(0, f"ds_write_b128 v{vL16}, {V(QA+4,4)} offset:{L_SX + 1024*w}")
    q.valq += [f"v_mov_b64 {V(VA,2)}, 0", f"v_mov_b64 {V(VA+2,2)}, 0"]
    qkv('K', 3, 1, val=2)
    probe('kend')
    vord = [3, 4, 5, 6, 7, 8, 9, 0, 1, 2]
    vl = []
    for n, i in enumerate(vord):
        vl += [(i, 1, None), (i, 0, vord[n + 3] if n + 3 < 10 else None)] if n == 0 else [(i, 0, None), (i, 1, vord[n + 3] if n + 3 < 10 else None)]

    def vstep(**kw):
        i, c, nx = vl.pop(0)
        if nx is None: qkv('V', i, c, **kw)
        else:
            qkv('V', i, c, after=lambda: q.memq.insert(0, frag(nx, fb[i])), **kw)
            fb[nx] = fb[i]

    q.valq += [cvt(KA, KA), cvt(KA + 1, KA + 2)]
    vstep(val=2)
    q.valq += [cvt(KA + 4, KA + 4), cvt(KA + 5, KA + 6)]
    vstep(val=0)
    q.m(tm(KA, KA), val=2); q.fill()
    oth = [(w + k) % 4 for k in (1, 2, 3)]
    rdst = [X, X + 4, T]
    q.raw("s_waitcnt lgkmcnt(0)\ns_barrier")
    q.memq = [f"ds_read_b128 {V(rdst[k],4)}, v{vL16} offset:{L_SX + 1024*oth[k]}" for k in range(3)] + q.memq
    q.m(tm(KA + 4, KA + 4)); q.fill()
    q.valq += [cvt(KA, KA), cvt(KA + 1, KA + 2)]
    vstep(val=2)
    q.valq += [cvt(KA + 2, KA + 4), cvt(KA + 3, KA + 6)]
    vstep(val=2)
    q.m(mm(KA + 4, KA, QA)); q.fill()
    q.memq.append(f"buffer_store_dwordx4 {V(KA,4)}, v{vL16}, {wsr}, s{sKM} offen sc1")
    sx = QA + 4
    for k in range(3):
        q.valq += [f"v_add_f32 v{sx+r}, v{sx+r}, v{rdst[k]+r}" for r in range(4)]
    vstep(val=2)
    vstep(mem=0, val=0, post=f"ds_write_b128 v{vSm}, {V(KA+4,4)} offset:{L_SM + 512*w}")
    probe('smw')
    vstep(val=2); vstep(val=2); vstep(val=2); vstep(val=2); vstep(val=2)
    assert not q.valq
    q.raw("s_waitcnt lgkmcnt(0)\ns_barrier")
    for k in range(3): q.raw(f"ds_read_b128 {V(rdst[k],4)}, v{vSm} offset:{L_SM + 512*oth[k]}")
    mx, m2 = QA, QA + 1
    q.valq += [f"v_max3_f32 v{mx}, v{sx}, v{sx+1}, v{sx+2}", f"v_max_f32 v{mx}, v{mx}, v{sx+3}",
               f"v_max_f32_dpp v{mx}, v{mx}, v{mx} row_ror:8 row_mask:0xf bank_mask:0xf",
               f"v_mov_b32 v{m2}, v{mx}", f"v_permlane32_swap_b32 v{mx}, v{m2}", f"v_max_f32 v{mx}, v{mx}, v{m2}"]
    while vl: vstep()
    q.flush()
    probe('vend')
    sm_ = KA + 4
    for k in range(3):
        q.raw('\n'.join(f"v_add_f32 v{sm_+r}, v{sm_+r}, v{rdst[k]+r}" for r in range(4)))
    for x in ts_load(6, X): q.raw(x)
    q.raw(f"""
v_max3_f32 v{mx}, v{mx}, v{sm_}, v{sm_+1}
v_max3_f32 v{mx}, v{mx}, v{sm_+2}, v{sm_+3}
v_mov_b32 v{m2}, v{mx}
{cvt(VA, VA)}
{cvt(VA+1, VA+2)}
v_permlane16_swap_b32 v{mx}, v{m2}
v_max_f32 v{mx}, v{mx}, v{m2}
v_mul_f32 v{mx}, s{sCexp}, v{mx}
""")
    for r in range(4): q.raw(f"v_fma_f32 v{sx+r}, v{sx+r}, s{sCexp}, -v{mx}\nv_exp_f32 v{sx+r}, v{sx+r}")
    for r in range(4): q.raw(f"v_fma_f32 v{sm_+r}, v{sm_+r}, s{sCexp}, -v{mx}\nv_exp_f32 v{sm_+r}, v{sm_+r}")
    q.raw(f"""
{cvt(QA, sx)}
{cvt(QA+1, sx+2)}
{cvt(QA+2, sx)}
{cvt(QA+3, sx+2)}
{cvt(KA, sm_)}
{cvt(KA+1, sm_+2)}
v_mov_b32_dpp v{QA}, v{QA+2} row_ror:8 row_mask:0xf bank_mask:0xc
v_mov_b32_dpp v{QA+1}, v{QA+3} row_ror:8 row_mask:0xf bank_mask:0xc
v_mov_b32_dpp v{QA+2}, v{QA+2} row_ror:8 row_mask:0xf bank_mask:0x3
v_mov_b32_dpp v{QA+3}, v{QA+3} row_ror:8 row_mask:0xf bank_mask:0x3
{cvt(VA+2, VA+4)}
{cvt(VA+3, VA+6)}
v_mov_b32 v{T}, 0x40004000
v_mov_b32 v{T+1}, 0x40004000
v_mov_b32 v{T+2}, 0x40004000
v_mov_b32 v{T+3}, 0x40004000
v_mov_b32 v{KA+2}, 0x3f803f80
v_mov_b32 v{KA+3}, 0x3f803f80
buffer_store_dwordx4 {V(VA,4)}, v{vL16}, {wsr}, s{sKM} offen offset:1024 sc1
s_cmp_eq_u32 s{sStep}, 63
s_cbranch_scc1 {done}
""")
    probe('pv')
    m16 = lambda d, a, b, c: f"v_mfma_f32_16x16x16_bf16 {V(d,4)}, {V(a,2)}, {V(b,2)}, {c}"
    z = lambda r: f"v_mov_b64 {V(r,2)}, 0"
    q.valq += [z(QA + 4), z(QA + 6), z(KA + 4), z(KA + 6), z(VA + 4), z(VA + 6)]
    q.m(mm(AB2, T, QA), val=2); q.fill()
    q.m(mm(AB0, Y, QA), val=2); q.fill()
    q.m(m16(AB2, KA + 2, KA, V(AB2, 4)), val=2); q.fill()
    q.m(mm(AB1, Y + 4, QA)); q.memq += ts_load(7, Y); q.valq += [z(QA), z(QA + 2)]; q.fill()
    q.m(m16(AB0, VA, KA, V(AB0, 4)), val=0, post=f"v_rcp_f32 v{AB2}, v{AB2}"); q.fill()
    q.m(m16(AB1, VA + 2, KA, V(AB1, 4)), val=1); q.fill()
    for r in range(4): q.raw(f"v_mul_f32 v{AB0+r}, v{AB0+r}, v{AB2}")
    q.raw(cvt(T, AB0) + '\n' + cvt(T + 1, AB0 + 2))
    for r in range(4): q.raw(f"v_mul_f32 v{AB1+r}, v{AB1+r}, v{AB2}")
    q.raw(cvt(T + 2, AB1) + '\n' + cvt(T + 3, AB1 + 2))
    q.raw(f"ds_write_b128 v{vL16}, {V(T,4)} offset:{L_O + 1024*w}")
    probe('ow')
    oacc = [VA + 4, QA + 4, KA + 4, QA, KA]
    ob = [T, AB0, AB1, AB2]

    def op(p, k, after=None, **kw):
        sl = sm(('O', p, k), oacc[p], ob[k], **kw)
        if after: after()
        if sl in (S1, S2): stage_next(sl)
        q.fill()
        return sl

    q.valq += [z(KA), z(KA + 2)]
    op(0, 0, mem=0); op(1, 0, mem=0); op(2, 0, mem=0)
    q.raw("s_waitcnt lgkmcnt(0)\ns_barrier")
    q.memq = [f"ds_read_b128 {V(ob[k+1],4)}, v{vL16} offset:{L_O + 1024*oth[k]}" for k in range(3)] + q.memq
    q.raw(q.memq.pop(0))
    op(3, 0, mem=2); op(4, 0, mem=4, post=f"s_mov_b32 s{sT0}, s{sPst}")
    pre = {S1: 2, S2: 3, X: 1, Y: 4}

    def pstore(p):
        return (f"buffer_store_dwordx2 {V(oacc[p],2)}, v{vPst}, {wsr}, s{sT0} offen\n"
                f"s_add_u32 s{sT0}, s{sT0}, 65536")

    for p in range(5):
        for k in (1, 2, 3):
            post = ''
            if p > 0 and k == 2:
                q.valq += [cvt(oacc[p - 1], oacc[p - 1]), cvt(oacc[p - 1] + 1, oacc[p - 1] + 2)]
                sl = op(p, k, val=2, post=pstore(p - 1))
                if p == 1: q.memq += ts_load(0, VA)
            else:
                sl = op(p, k)
            if sl in pre and p < 4: q.memq += ts_load(pre[sl], sl)
    q.raw(cvt(oacc[4], oacc[4]) + '\n' + cvt(oacc[4] + 1, oacc[4] + 2) + '\n' + pstore(4))
    probe('oend')
    q.flush()
    for x in ts_load(4, Y): q.raw(x)
    q.raw(f"""
s_add_u32 s{sStep}, s{sStep}, 1
s_add_u32 s{sMem}, s{sMem}, 10240
s_add_u32 s{sMem2}, s{sMem2}, 10240
s_add_u32 s{sKV}, s{sKV}, {KV_SEG}
s_add_u32 s{sKM}, s{sKM}, {KM_SEG}
s_add_u32 s{sPst}, s{sPst}, s{sPx}
""")
    if w < 3:
        if w == 2: q.raw(f"s_cmp_ge_u32 s{sH}, 16\ns_cbranch_scc1 {nored}")
        SelR, acc = QA, QA + 4
        q.raw(f"""
v_mov_b32 v{acc}, 0x4000
v_cndmask_b32 v{acc}, v{acc}, 2.0, s[{mOdd}:{mOdd+1}]
""")
        for r in range(4): q.raw(f"v_cndmask_b32 v{SelR+r}, 0, v{acc}, s[{mSel+2*r}:{mSel+2*r+1}]")
        q.raw(f"{poll1}:")
        for k in range(4):
            q.raw(f"buffer_load_dwordx4 {V(T+4*k,4)}, v{vL16}, {wsr}, s{sPrd} offen offset:{1024*k} sc1")
        for k in range(4):
            q.raw(mm(acc, T + 4 * k, SelR, '0' if k == 0 else V(acc, 4)))
        q.raw(f"""
v_permlane32_swap_b32 v{acc}, v{acc+1}
v_permlane32_swap_b32 v{acc+2}, v{acc+3}
v_add_f32 v{acc}, v{acc}, v{acc+1}
v_add_f32 v{acc+1}, v{acc+2}, v{acc+3}
v_cmp_u_f32 vcc, v{acc}, v{acc+1}
{cvt(acc, acc)}
s_cbranch_vccnz {retry1}
{poll1}_ok:
buffer_store_dword v{acc}, v{vPub}, {wsr}, s{sPub} offen
""")
        probe('pub')
        q.raw(f"""
s_mov_b32 s{sRst}, s{sPrd}
s_add_u32 s{sPrd}, s{sPrd}, s{sPx}
s_add_u32 s{sPub}, s{sPub}, 10240
s_add_u32 s{sPoi}, s{sPoi}, 10240
{nored}:
""")
    q.raw(f"s_sub_u32 s{sPx}, 0, s{sPx}")
    for r in range(QA, QA + 16, 2): q.raw(z(r))
    if prof:
        q.raw(f"""s_waitcnt lgkmcnt(0)
s_sub_u32 s{sTm+2}, s{sTm+2}, s{sTm}
s_add_u32 s{sTm+4}, s{sTm+4}, s{sTm+2}""")
    q.raw(f"s_branch {top}")
    for rt, pl, cnt in ((retry2, poll2, sTm + 5), (retry1, poll1, sTm + 6)):
        if rt == retry1 and w == 3: continue
        q.raw(f"""
{rt}:
s_add_u32 s{cnt}, s{cnt}, 1
s_sub_u32 s{sBud}, s{sBud}, 1
s_cmp_gt_i32 s{sBud}, 0
s_cbranch_scc1 {pl}
s_branch {pl}_ok
""")
    q.raw(f"{done}:")
    assert not ldsq
    q.emit()


def team_kernel(name, layer, prof=None):
    P = Prog(name)
    end = P.lbl('end')
    entry(P)
    P(f"@raw s_memtime s[{sTm+8}:{sTm+9}]")
    form_team(P)
    P(f"s_cmp_lt_i32 s{sH}, 0\ns_cbranch_scc1 {end}")
    wl = [P.lbl(f'w{w}') for w in range(4)]
    for w in range(1, 4): P(f"s_cmp_eq_u32 s{sW}, {w}\ns_cbranch_scc1 {wl[w]}")
    for w in range(4):
        P(f"{wl[w]}:")
        P(f"@raw s_memtime s[{sTm+10}:{sTm+11}]")
        prologue(P, w)
        layer_init(P, w, layer, 32)
        for k in (4, 5, 6): P(f"s_mov_b32 s{sTm+k}, 0")
        P(f"@raw s_memtime s[{sTm+12}:{sTm+13}]")
        step_loop(P, w, layer, prof)
        if prof is not None:
            P(f"""s_memtime s[{sTm+14}:{sTm+15}]
s_waitcnt lgkmcnt(0)
s_sub_u32 s{sTm+14}, s{sTm+14}, s{sTm+12}
s_sub_u32 s{sTm+12}, s{sTm+12}, s{sTm+10}
s_sub_u32 s{sTm+10}, s{sTm+10}, s{sTm+8}
v_mov_b32 v8, s{sTm+4}
v_mov_b32 v9, s{sTm+5}
v_mov_b32 v10, s{sTm+6}
v_mov_b32 v11, s{sTm+14}
v_mov_b32 v12, s{sTm+10}
v_mov_b32 v13, s{sTm+12}
v_mov_b32 v14, s{sBud}
v_mov_b32 v15, 0
v_mov_b32 v16, 0
s_lshl_b32 s{sT0}, s{sH}, 7
s_add_u32 s{sT0}, s{sT0}, {PROF_OFF + 32*w}
buffer_store_dwordx4 v[8:11], v16, s[{WS}:{WS+3}], s{sT0} offen
buffer_store_dwordx4 v[12:15], v16, s[{WS}:{WS+3}], s{sT0} offen offset:16
""")
        P("s_endpgm")
    P(f"{end}:\ns_endpgm")
    body = P.finish()
    return kernel_text(name, body), P


if __name__ == '__main__':
    txt, P = team_kernel('rec0_kernel', 0, prof='')
    open('team.s', 'w').write('.amdgcn_target "amdgcn-amd-amdhsa--gfx950"\n' + txt)
    print(len(P.ins), 'instr', P.n_nop, 'nops', P.n_wait, 'waits')
```

```python
import struct
from asmlib import *
from layout import *

WS, SQ, SK, SV, SO, SM0, DBG = 4, 8, 12, 16, 20, 24, 28
sW, sBud = 3, 32
sX = 30
SA, SB = 36, 40
sRb, sWb, sSrc, sN, sDst, sStr, sProg, sLay = 44, 45, 46, 47, 48, 49, 50, 51
sT0, sT1, sT2, sT3, sD, sB0, sB1, sCnt = 52, 53, 54, 55, 56, 57, 58, 59
sM = 60
sTm = 70
wsr = f"s[{WS}:{WS+3}]"
vL16 = 0
OOB = 0x7ff00000


def fl(x): return '0x%08x' % struct.unpack('<I', struct.pack('<f', x))[0]
def cvt(d, a, b=None): return f"v_cvt_pk_bf16_f32 v{d}, v{a}, v{a+1 if b is None else b}"


def srd(P, d, ptr, nbytes):
    P(f"s_mov_b32 s{d}, s{ptr}\ns_mov_b32 s{d+1}, s{ptr+1}\ns_mov_b32 s{d+2}, {nbytes}\ns_mov_b32 s{d+3}, 0x20000")


def karg_srd(P, d, off, nbytes):
    P(f"s_load_dwordx2 s[{d}:{d+1}], s[0:1], {off}\ns_mov_b32 s{d+2}, {nbytes}\ns_mov_b32 s{d+3}, 0x20000")


def spin_tail(P, top, sleep=1):
    if sleep: P(f"s_sleep {sleep}")
    P(f"s_sub_u32 s{sBud}, s{sBud}, 1\ns_cmp_gt_i32 s{sBud}, 0\ns_cbranch_scc1 {top}")


def wait_dbg(P, word, target, t):
    top, dn = P.lbl('wd'), P.lbl('wdd')
    P(f"""s_cmp_lg_u32 s{sW}, 0
s_cbranch_scc1 {dn}
v_mov_b32 v{t}, {word}
{top}:
global_load_dword v{t+1}, v{t}, s[{DBG}:{DBG+1}] sc1
v_readfirstlane_b32 s{sT0}, v{t+1}
s_cmp_ge_u32 s{sT0}, {target}
s_cbranch_scc1 {dn}""")
    spin_tail(P, top, 2)
    P(f"{dn}:\ns_barrier")


def signal_dbg(P, word, t):
    dn = P.lbl('sd')
    P(f"""s_waitcnt vmcnt(0)
s_barrier
s_cmp_lg_u32 s{sW}, 0
s_cbranch_scc1 {dn}
s_mov_b64 exec, 1
v_mov_b32 v{t}, {word}
v_mov_b32 v{t+1}, 1
global_atomic_add v{t}, v{t+1}, s[{DBG}:{DBG+1}] sc1
s_mov_b64 exec, -1
{dn}:""")


def wait80(P, so, t):
    top, dn = P.lbl('w8'), P.lbl('w8d')
    P(f"""s_cmp_lg_u32 s{sW}, 0
s_cbranch_scc1 {dn}
v_lshlrev_b32 v{t}, 2, v{vL16}
{top}:
buffer_load_dword v{t+1}, v{t}, {wsr}, s{so} offen sc1
buffer_load_dword v{t+2}, v{t}, {wsr}, s{so} offen offset:1024 sc1
v_and_b32 v{t+1}, v{t+1}, v{t+2}
v_cmp_eq_u32 vcc, 0, v{t+1}
s_cbranch_vccz {dn}""")
    spin_tail(P, top, 1)
    P(f"{dn}:\ns_barrier")


def signal80(P, so, t):
    dn = P.lbl('s8')
    P(f"""s_waitcnt vmcnt(0)
s_barrier
s_cmp_lg_u32 s{sW}, 0
s_cbranch_scc1 {dn}
s_mov_b64 exec, 1
v_mov_b32 v{t}, 1
buffer_store_dword v{t}, off, {wsr}, s{so} sc1
s_mov_b64 exec, -1
{dn}:""")


def stamp(P, k):
    if PROF[0]: P(f"s_memrealtime s[{sTm+2*k}:{sTm+2*k+1}]")


PROF = [False]


def dump_prof(P, slot_sreg, base, n):
    if not PROF[0]: return
    dn = P.lbl('pf')
    P(f"s_cmp_lg_u32 s{sW}, 0\ns_cbranch_scc1 {dn}\ns_lshl_b32 s{sT0}, s{slot_sreg}, 6\ns_add_u32 s{sT0}, s{sT0}, {PROF_OFF+base}")
    for k in range(n):
        P(f"v_mov_b32 v1, s{sTm+2*k}\nbuffer_store_dword v1, off, {wsr}, s{sT0} offset:{4*k}")
    P(f"v_mov_b32 v1, s{sBud}\nbuffer_store_dword v1, off, {wsr}, s{sT0} offset:60\n{dn}:")


FB, ACC = 8, (32, 48)
vRd = 64
vDm = 72
LA = 4
L_X = 122880


class Stream:
    def __init__(s, P, mode, afirst, wreg, src, adv, sc1=True):
        s.P, s.mode, s.afirst, s.wreg, s.src, s.adv = P, mode, afirst, wreg, src, adv
        s.sc = ' sc1' if sc1 else ''

    def dma(s):
        r = []
        for i in range(10):
            if s.mode == 'frag':
                g = []
                if i % 4 == 0:
                    g.append(f"s_add_u32 m0, s{sWb}, {1024*i}")
                    g.append(f"s_add_u32 s{sT3}, s{sSrc}, {1024*i}")
                g.append(f"buffer_load_dwordx4 v{vL16}, {s.src}, s{sT3} offen offset:{1024*(i%4)}{s.sc} lds")
            else:
                g = [f"s_add_u32 m0, s{sWb}, {1024*i}", "s_nop 0",
                     f"buffer_load_dwordx4 v{vDm+i}, {s.src}, s{sSrc} offen{s.sc} lds"]
            r.append('\n'.join(g))
        r.append(f"s_add_u32 s{sWb}, s{sWb}, 40960\ns_cmp_ge_u32 s{sWb}, 122880\ns_cselect_b32 s{sT3}, 122880, 0\ns_sub_u32 s{sWb}, s{sWb}, s{sT3}")
        r.append(s.adv)
        return r

    def read(s, k):
        d = V(FB + 4 * (k % 5), 4)
        if s.mode == 'frag': return f"ds_read_b128 {d}, v{vRd} offset:{1024*k}"
        return f"ds_read_b128 {d}, v{vRd + k%8} offset:{256*(k//8)}"

    def start(s):
        P = s.P
        P(f"s_mul_i32 s{sWb}, s{sW}, 10240\ns_mov_b32 s{sRb}, 0")
        if s.mode == 'frag': P(f"v_mov_b32 v{vRd}, v{vL16}")
        else:
            P(f"""v_bfe_u32 v{FB}, v{vL16}, 4, 5
v_mul_u32_u24 v{FB+1}, 1280, v{FB}
v_and_b32 v{FB}, 15, v{FB}
v_lshrrev_b32 v{FB+2}, 9, v{vL16}
v_xor_b32 v{FB}, v{FB}, v{FB+2}""")
            for k in range(8):
                P(f"v_xor_b32 v{FB+2}, {2*k}, v{FB}\nv_lshl_add_u32 v{vRd+k}, v{FB+2}, 4, v{FB+1}")
        for _ in range(2):
            for x in s.dma(): P(x)
        P("s_waitcnt vmcnt(10)\ns_barrier")
        for k in range(LA): P(s.read(k))

    def body(s, acc, side, post_bar='', per=2, extra_rd=()):
        P = s.P
        q = list(side) + s.dma()
        nslot = 40 - LA - 1
        for k in range(40):
            f = V(FB + 4 * (k % 5), 4)
            a, b = (f, s.wreg(k)) if s.afirst else (s.wreg(k), f)
            P(f"v_mfma_f32_32x32x16_bf16 {V(acc,16)}, {a}, {b}, {'0' if k == 0 else V(acc,16)}")
            if k == 40 - LA:
                assert not q
                P(f"s_add_u32 s{sRb}, s{sRb}, 1\ns_cmp_eq_u32 s{sRb}, 3\ns_mov_b32 s{sD}, 40960\ns_cmov_b32 s{sD}, -81920\ns_cselect_b32 s{sRb}, 0, s{sRb}")
                for r in ([vRd] if s.mode == 'frag' else range(vRd, vRd + 8)): P(f"v_add_u32 v{r}, s{sD}, v{r}")
                for r in extra_rd: P(f"v_add_u32 v{r}, s{sD}, v{r}")
                P("s_waitcnt vmcnt(10) lgkmcnt(2)\ns_barrier")
                P(post_bar)
            P('@need ' + V(FB + 4 * ((k + 1) % 5), 4))
            P(s.read((k + LA) % 40))
            if k >= 1 and q:
                left = nslot - k + 1
                n = max(per, -(-len(q) // max(left, 1)))
                for _ in range(min(n, len(q))): P(q.pop(0))

    def run(s, n, epi, pre=lambda: [], post_bar='', **kw):
        P = s.P
        top, out = P.lbl('st'), P.lbl('so')
        s.start()
        P(f"s_mov_b32 s{sCnt}, {n//2}")
        s.body(ACC[0], pre(), **kw)
        P(f"{top}:")
        s.body(ACC[1], epi(ACC[0]) + pre(), post_bar, **kw)
        if n > 2:
            P(f"s_sub_u32 s{sCnt}, s{sCnt}, 1\ns_cmp_eq_u32 s{sCnt}, 0\ns_cbranch_scc1 {out}")
            s.body(ACC[0], epi(ACC[1]) + pre(), post_bar, **kw)
            P(f"s_branch {top}\n{out}:")
        for x in epi(ACC[1]): P(x)


def row_voffsets(P, perm):
    t = FB
    P(f"s_mul_i32 s{sT0}, s{sW}, 640\nv_lshrrev_b32 v{t}, 4, v{vL16}\nv_add_u32 v{t}, s{sT0}, v{t}\ns_mov_b32 s{sT1}, 52429")
    for i in range(10):
        P(f"""v_add_u32 v{t+1}, {64*i}, v{t}
v_mul_u32_u24 v{t+2}, s{sT1}, v{t+1}
v_lshrrev_b32 v{t+2}, 22, v{t+2}
v_mul_u32_u24 v{t+3}, 80, v{t+2}
v_sub_u32 v{t+1}, v{t+1}, v{t+3}
v_and_b32 v{t+3}, 15, v{t+2}
v_xor_b32 v{t+1}, v{t+1}, v{t+3}""")
        if perm:
            P(f"""v_and_b32 v{t+3}, 1, v{t+2}
v_bfe_u32 v{t+4}, v{t+2}, 1, 1
v_lshl_add_u32 v{t+3}, v{t+4}, 4, v{t+3}
v_bfe_u32 v{t+4}, v{t+2}, 2, 1
v_lshl_add_u32 v{t+3}, v{t+4}, 6, v{t+3}
v_bfe_u32 v{t+4}, v{t+2}, 3, 1
v_lshl_add_u32 v{t+3}, v{t+4}, 1, v{t+3}
v_bfe_u32 v{t+4}, v{t+2}, 4, 1
v_lshl_add_u32 v{t+2}, v{t+4}, 3, v{t+3}""")
        P(f"v_mul_u32_u24 v{t+2}, 1280, v{t+2}\nv_lshl_add_u32 v{vDm+i}, v{t+1}, 4, v{t+2}")


def pack16(acc, order=None):
    return [cvt(acc + i, acc + 2 * i) for i in range(8)]


WV = 96


def load_stationary(P, so):
    for k in range(40):
        if k % 4 == 0 and k: P(f"s_add_u32 s{so}, s{so}, 4096")
        P(f"buffer_load_dwordx4 {V(WV+4*k,4)}, v{vL16}, {wsr}, s{so} offen offset:{1024*(k%4)} sc1")


def final_gemm(P):
    P(f"""s_mul_i32 s{sB0}, s{sX}, 52429
s_lshr_b32 s{sB0}, s{sB0}, 18
s_mul_i32 s{sT0}, s{sB0}, 5
s_sub_u32 s{sB1}, s{sX}, s{sT0}
s_lshl_b32 s{sB1}, s{sB1}, 2
s_add_u32 s{sB1}, s{sB1}, s{sW}
s_mul_i32 s{sT1}, s{sB1}, 40960
s_add_u32 s{sT1}, s{sT1}, {R2_OFF}""")
    karg_srd(P, SA, 80, 2048 * 1280)
    load_stationary(P, sT1)
    vSt = 1
    P(f"""s_mul_i32 s{sDst}, s{sB0}, 40960
s_mul_i32 s{sT0}, s{sW}, 10240
s_add_u32 s{sSrc}, s{sDst}, s{sT0}
s_add_u32 s{sSrc}, s{sSrc}, {Z_OFF[2]}
s_lshl_b32 s{sB1}, s{sB1}, 6
s_add_u32 s{sDst}, s{sDst}, s{sB1}
v_bfe_u32 v{vSt}, v{vL16}, 4, 5
v_mul_u32_u24 v{vSt}, 1280, v{vSt}
v_lshrrev_b32 v2, 9, v{vL16}
v_lshl_add_u32 v{vSt}, v2, 5, v{vSt}
s_mov_b32 s{sStr}, {32*40960}
s_mov_b32 s{sT2}, {FL_Z[2]}
s_waitcnt vmcnt(0) lgkmcnt(0)""")
    wait80(P, sT2, 2)
    st = Stream(P, 'frag', False, lambda k: V(WV + 4 * k, 4), wsr,
                f"s_add_u32 s{sSrc}, s{sSrc}, s{sStr}\ns_mov_b32 s{sStr}, 0")
    epi = lambda acc: pack16(acc) + [f"buffer_store_dwordx4 {V(acc+4*f,4)}, v{vSt}, s[{SA}:{SA+3}], s{sDst} offen offset:{16*f}" for f in range(2)] + [f"s_add_u32 s{sDst}, s{sDst}, {32*40960}"]
    st.run(2, epi)
    P("s_waitcnt vmcnt(0)")


def gen_table(P, which):
    top, out = P.lbl('gt'), P.lbl('go')
    m, hh, f, ph, am, x, o = 1, 2, 3, 4, 5, 6, 8
    P(f"""s_lshl_b32 s{sN}, s{sX}, 2
s_add_u32 s{sN}, s{sN}, s{sW}
v_bfe_u32 v{x}, v{vL16}, 4, 5
v_lshrrev_b32 v{hh}, 9, v{vL16}
v_bfe_u32 v{o}, v{x}, 2, 1
s_mov_b32 s{sD}, {fl(1/640)}""")
    if which == 1:
        P(f"""v_bfe_u32 v{o+1}, v{x}, 3, 1
v_and_b32 v{m}, 0x13, v{x}
v_lshl_add_u32 v{m}, v{o}, 3, v{m}
v_lshl_add_u32 v{m}, v{o+1}, 2, v{m}""")
    else:
        P(f"""v_lshrrev_b32 v{o+1}, 3, v{x}
v_and_b32 v{m}, 3, v{x}
v_lshl_add_u32 v{m}, v{o}, 4, v{m}
v_lshl_add_u32 v{m}, v{o+1}, 2, v{m}""")
    P(f"""{top}:
s_mul_i32 s{sT0}, s{sN}, 1639
s_lshr_b32 s{sT0}, s{sT0}, 16
s_mul_i32 s{sT1}, s{sT0}, 40
s_sub_u32 s{sT1}, s{sN}, s{sT1}
s_lshl_b32 s{sT0}, s{sT0}, 5
s_lshl_b32 s{sT1}, s{sT1}, 1
v_add_u32 v{f}, s{sT0}, v{m}
v_add_u32 v{x}, s{sT1}, v{hh}""")
    a1, a0 = fl((2 / 640) ** .5), fl((1 / 640) ** .5)
    if which == 1:
        P(f"""v_and_b32 v{ph}, 1, v{f}
v_cvt_f32_u32 v{ph}, v{ph}
v_mul_f32 v{ph}, 0.5, v{ph}
v_mul_f32 v{ph}, 0.5, v{ph}
v_cmp_gt_u32 vcc, 2, v{f}
v_cndmask_b32 v{ph}, v{ph}, 0, vcc
v_mov_b32 v{am}, {a1}
v_mov_b32 v{o}, {a0}
v_cndmask_b32 v{am}, v{am}, v{o}, vcc
v_cmp_eq_u32 vcc, 0, v{f}
v_lshrrev_b32 v{f}, 1, v{f}
v_mov_b32 v{o}, 320
v_cndmask_b32 v{f}, v{f}, v{o}, vcc
v_lshlrev_b32 v{x}, 3, v{x}
v_mul_u32_u24 v{x}, v{x}, v{f}
v_cvt_f32_u32 v{x}, v{x}
v_cvt_f32_u32 v{f}, v{f}""")
        for e in range(8):
            P(f"""v_fma_f32 v{o+e}, v{x}, s{sD}, v{ph}
v_add_f32 v{x}, v{x}, v{f}
v_fract_f32 v{o+e}, v{o+e}
v_cos_f32 v{o+e}, v{o+e}""")
        for e in range(8): P(f"v_mul_f32 v{o+e}, v{am}, v{o+e}")
    else:
        P(f"""v_cmp_eq_u32 vcc, 0, v{x}
v_lshlrev_b32 v{x}, 2, v{x}
v_mul_u32_u24 v{x}, v{x}, v{f}
v_cvt_f32_u32 v{x}, v{x}
v_lshlrev_b32 v{ph}, 31, v{f}
v_cvt_f32_u32 v{f}, v{f}""")
        for c in range(4):
            P(f"""v_mul_f32 v{o+2*c}, s{sD}, v{x}
v_add_f32 v{x}, v{x}, v{f}
v_fract_f32 v{o+2*c}, v{o+2*c}
v_sin_f32 v{o+2*c+1}, v{o+2*c}
v_cos_f32 v{o+2*c}, v{o+2*c}""")
        for c in range(4):
            P(f"v_mul_f32 v{o+2*c}, {a1}, v{o+2*c}\nv_mul_f32 v{o+2*c+1}, {fl(-(2/640)**.5)}, v{o+2*c+1}")
        P(f"""v_mov_b32 v{am}, {a0}
v_xor_b32 v{ph}, v{ph}, v{am}
v_cndmask_b32 v{o}, v{o}, v{ph}, vcc
v_cndmask_b32 v{o+1}, v{o+1}, v{am}, vcc""")
    for i in range(4): P(cvt(o + 8 + i, o + 2 * i))
    P(f"""s_lshl_b32 s{sT0}, s{sN}, 10
s_add_u32 s{sT0}, s{sT0}, {R1_OFF if which == 1 else R2_OFF}
buffer_store_dwordx4 {V(o+8,4)}, v{vL16}, {wsr}, s{sT0} offen sc1
s_add_u32 s{sN}, s{sN}, 128
s_cmp_lt_u32 s{sN}, 800
s_cbranch_scc1 {top}""")


def role_at(P, stage):
    P(f"""s_lshl_b32 s{sT0}, s{sX}, 2
s_add_u32 s{sT0}, s{sT0}, s{sW}
s_lshl_b32 s{sT0}, s{sT0}, 9
s_add_u32 s{sT0}, s{sT0}, {FL_OFF}
v_mov_b64 v[2:3], 0
v_lshrrev_b32 v1, 1, v{vL16}
buffer_store_dwordx2 v[2:3], v1, {wsr}, s{sT0} offen sc1""")
    gen_table(P, 1)
    signal_dbg(P, D_INIT1, 2)
    stamp(P, 1)
    gen_table(P, 2)
    top = P.lbl('po')
    P(f"""s_lshl_b32 s{sT0}, s{sX}, 13
s_lshl_b32 s{sT1}, s{sW}, 11
s_add_u32 s{sB0}, s{sT0}, s{sT1}
s_add_u32 s{sT0}, s{sB0}, {KM_OFF[0]}
v_mov_b64 v[4:5], -1
v_mov_b64 v[6:7], -1
s_mov_b32 s{sN}, 64
{top}:
buffer_store_dwordx4 v[4:7], v{vL16}, {wsr}, s{sT0} offen sc1
buffer_store_dwordx4 v[4:7], v{vL16}, {wsr}, s{sT0} offen offset:1024 sc1
s_add_u32 s{sT0}, s{sT0}, {KM_SEG}
s_sub_u32 s{sN}, s{sN}, 1
s_cmp_lg_u32 s{sN}, 0
s_cbranch_scc1 {top}""")
    signal_dbg(P, D_INIT2, 2)
    stamp(P, 2)
    if stage < 3: return
    import attn
    attn.at_main(P, 2 if stage >= 4 else 1)


def role_o(P, stage):
    vSt = 1
    karg_srd(P, SA, 0, 2048 * 1280)
    P(f"""s_mul_i32 s{sB0}, s{sX}, 52429
s_lshr_b32 s{sB0}, s{sB0}, 18
s_mul_i32 s{sT0}, s{sB0}, 5
s_sub_u32 s{sB1}, s{sX}, s{sT0}
s_lshl_b32 s{sB1}, s{sB1}, 2
s_add_u32 s{sB1}, s{sB1}, s{sW}""")
    P(f"""v_mov_b64 v[4:5], -1
v_mov_b64 v[6:7], -1
s_lshl_b32 s{sT0}, s{sX}, 2
s_add_u32 s{sT0}, s{sT0}, s{sW}
s_lshl_b32 s{sT1}, s{sT0}, 13
s_lshl_b32 s{sT0}, s{sT0}, 9
v_lshrrev_b32 v2, 1, v{vL16}""")
    for l in range(2):
        P(f"s_add_u32 s{sT2}, s{sT0}, {SSQ_OFF[l]}\nbuffer_store_dwordx2 v[4:5], v2, {wsr}, s{sT2} offen sc1")
        for k in range(8):
            if k % 4 == 0: P(f"s_add_u32 s{sT2}, s{sT1}, {Y_OFF[l] + 1024*k}")
            P(f"buffer_store_dwordx4 v[4:7], v{vL16}, {wsr}, s{sT2} offen offset:{1024*(k%4)} sc1")
    row_voffsets(P, False)
    wait_dbg(P, D_INIT1, 32, 2)
    stamp(P, 1)
    P(f"s_mul_i32 s{sT1}, s{sB1}, 40960\ns_add_u32 s{sT1}, s{sT1}, {R1_OFF}")
    load_stationary(P, sT1)
    wreg = lambda k: V(WV + 4 * k, 4)
    P(f"""s_mul_i32 s{sSrc}, s{sB0}, {4*40960}
s_lshl_b32 s{sDst}, s{sB1}, 11
s_add_u32 s{sDst}, s{sDst}, s{sSrc}
s_add_u32 s{sDst}, s{sDst}, {Z_OFF[0]}
s_mov_b32 s{sN}, 0
s_waitcnt lgkmcnt(0)""")
    st = Stream(P, 'row', False, wreg, f"s[{SA}:{SA+3}]",
                f"s_add_u32 s{sN}, s{sN}, 1\ns_cmp_lt_u32 s{sN}, 4\ns_cselect_b32 s{sT3}, 40960, 0\ns_add_u32 s{sSrc}, s{sSrc}, s{sT3}", sc1=False)
    epi = lambda acc: pack16(acc) + [f"buffer_store_dwordx4 {V(acc+4*f,4)}, v{vL16}, {wsr}, s{sDst} offen offset:{1024*f} sc1" for f in range(2)] + [f"s_add_u32 s{sDst}, s{sDst}, 40960"]
    st.run(4, epi)
    P(f"s_lshl_b32 s{sT2}, s{sX}, 6\ns_add_u32 s{sT2}, s{sT2}, {FL_Z[0]}\ns_waitcnt lgkmcnt(0)")
    signal80(P, sT2, 2)
    stamp(P, 2)
    row_voffsets(P, True)
    P(f"""s_mul_i32 s{sStr}, s{sB0}, {2*163840}
s_mov_b32 s{sSrc}, s{sStr}
s_mov_b32 s{sN}, 0
s_lshl_b32 s{sDst}, s{sB1}, 18
s_lshl_b32 s{sT0}, s{sB0}, 14
s_add_u32 s{sDst}, s{sDst}, s{sT0}
s_add_u32 s{sDst}, s{sDst}, {WOT_OFF}
s_mov_b32 s{sProg}, 512
v_bfe_u32 v2, v{vL16}, 6, 1
v_bfe_u32 v3, v{vL16}, 7, 1
v_and_b32 v{vSt}, 0x30, v{vL16}
v_lshl_add_u32 v{vSt}, v2, 7, v{vSt}
v_lshl_add_u32 v{vSt}, v3, 6, v{vSt}
v_bfe_u32 v2, v{vL16}, 8, 1
v_lshl_add_u32 v{vSt}, v2, 11, v{vSt}
v_bfe_u32 v2, v{vL16}, 9, 1
v_lshl_add_u32 v{vSt}, v2, 8, v{vSt}""")
    adv = f"""s_add_u32 s{sN}, s{sN}, 1
s_and_b32 s{sT3}, s{sN}, 1
s_mul_i32 s{sSrc}, s{sT3}, {4*1280}
s_and_b32 s{sT3}, s{sN}, 2
s_mul_i32 s{sT3}, s{sT3}, {16*1280}
s_add_u32 s{sSrc}, s{sSrc}, s{sT3}
s_and_b32 s{sT3}, s{sN}, 4
s_mul_i32 s{sT3}, s{sT3}, {32*1280}
s_add_u32 s{sSrc}, s{sSrc}, s{sT3}
s_add_u32 s{sSrc}, s{sSrc}, s{sStr}"""
    st = Stream(P, 'row', True, wreg, f"s[{SO}:{SO+3}]", adv, sc1=False)
    epi = lambda acc: pack16(acc) + [f"buffer_store_dwordx4 {V(acc+4*f,4)}, v{vSt}, {wsr}, s{sDst} offen offset:{1024*f} sc1" for f in range(2)] + [
        f"s_add_u32 s{sDst}, s{sDst}, s{sProg}\ns_sub_u32 s{sProg}, 4096, s{sProg}"]
    st.run(8, epi)
    P(f"s_lshl_b32 s{sT2}, s{sX}, 6\ns_add_u32 s{sT2}, s{sT2}, {FL_W}\ns_waitcnt lgkmcnt(0)")
    signal80(P, sT2, 2)
    stamp(P, 3)
    if stage < 3: return
    import attn
    attn.o_main(P, 2 if stage >= 4 else 1)


def role_p(P, stage):
    sHd, sMat = sB0, sB1
    P(f"""s_mul_i32 s{sHd}, s{sX}, 21846
s_lshr_b32 s{sHd}, s{sHd}, 16
s_mul_i32 s{sT0}, s{sHd}, 3
s_sub_u32 s{sMat}, s{sX}, s{sT0}
s_cmp_eq_u32 s{sMat}, 1
s_cselect_b32 s{SK}, s{SV}, s{SK}
s_cselect_b32 s{SK+1}, s{SV+1}, s{SK+1}
s_cmp_eq_u32 s{sMat}, 2
s_cselect_b32 s{SK}, s{SQ}, s{SK}
s_cselect_b32 s{SK+1}, s{SQ+1}, s{SK+1}
v_lshrrev_b32 v1, 8, v{vL16}
v_and_b32 v2, 0xf0, v{vL16}
v_lshlrev_b32 v3, 5, v1
v_xor_b32 v2, v2, v3
v_lshl_add_u32 v1, v1, 13, v2
s_mul_i32 s{sT0}, s{sW}, {160*8192}
s_lshl_b32 s{sT1}, s{sHd}, 8
s_add_u32 s{sT0}, s{sT0}, s{sT1}
s_mul_i32 s{sT1}, s{sW}, 40960""")
    for i in range(40):
        P(f"""s_add_u32 m0, s{sT1}, {1024*i}
s_add_u32 s{sT2}, s{sT0}, {4*8192*i}
buffer_load_dwordx4 v1, s[{SK}:{SK+3}], s{sT2} offen lds""")
    P(f"""v_bfe_u32 v2, v{vL16}, 8, 1
v_bfe_u32 v3, v{vL16}, 5, 1
s_cmp_eq_u32 s{sMat}, 1
s_cselect_b32 s{sT0}, 7, 4
s_cselect_b32 s{sT1}, 4, 7
v_lshlrev_b32 v2, s{sT0}, v2
v_lshlrev_b32 v3, s{sT1}, v3
v_add_u32 v2, v2, v3
v_bfe_u32 v3, v{vL16}, 4, 1
v_lshl_add_u32 v2, v3, 3, v2
v_bfe_u32 v3, v{vL16}, 6, 2
v_xor_b32 v4, s{sW}, v3
v_lshl_add_u32 v2, v4, 5, v2
v_lshl_add_u32 v2, v3, 8, v2
v_lshrrev_b32 v3, 9, v{vL16}
v_lshl_add_u32 v2, v3, 11, v2
v_add_u32 v3, 0x10000, v2
v_add_u32 v4, 0x20000, v2
s_waitcnt vmcnt(0)
s_barrier""")
    for k in range(40):
        for rho in range(2):
            o = 4096 * k + 1024 * rho
            P(f"ds_read_b64_tr_b16 {V(WV+4*k+2*rho,2)}, v{2 + (o>>16)} offset:{o & 0xffff}")
    P("s_waitcnt lgkmcnt(0)")
    stamp(P, 1)
    wait_dbg(P, D_INIT1, 32, 2)
    stamp(P, 2)
    P(f"s_mul_i32 s{sSrc}, s{sW}, 10240\ns_add_u32 s{sSrc}, s{sSrc}, {R1_OFF}")
    st = Stream(P, 'frag', True, lambda k: V(WV + 4 * k, 4), wsr, f"s_add_u32 s{sSrc}, s{sSrc}, 40960")
    st.start()
    P(f"v_mov_b32 v1, 0xffff\nv_cmp_gt_u32 vcc, 512, v{vL16}\nv_cndmask_b32 v1, -1, v1, vcc")

    def wepi(b):
        acc = ACC[b % 2]
        r = pack16(acc)
        if b == 0: r.append(f"v_and_b32 v{acc}, v1, v{acc}")
        return r + [f"v_accvgpr_write_b32 a{8*b+i}, v{acc+i}" for i in range(8)]
    for b in range(20): st.body(ACC[b % 2], wepi(b - 1) if b else [])
    for x in wepi(19): P(x)
    stamp(P, 3)
    vSt, vFo, vMk, vSq, vSr, vPw, vPr, vRw, vRr, SQB, RS = 1, 2, 3, 4, 5, 6, 7, 28, 29, 72, 80
    P(f"""v_bfe_u32 v{SQB}, v{vL16}, 8, 1
v_and_b32 v{vSt}, 0xf0, v{vL16}
v_lshl_add_u32 v{vSt}, v{SQB}, 10, v{vSt}
v_lshrrev_b32 v{SQB}, 9, v{vL16}
v_lshl_add_u32 v{vSt}, v{SQB}, 8, v{vSt}
s_lshl_b32 s{sT0}, s{sW}, 10
v_add_u32 v{SQB+1}, s{sT0}, v{vL16}
v_mov_b32 v{vFo}, {OOB}
v_cmp_eq_u32 vcc, 0, v{SQB+1}
v_cndmask_b32 v{vFo}, v{vFo}, 0, vcc
v_mov_b32 v{vMk}, 0xffff
v_cmp_gt_u32 vcc, 512, v{SQB+1}
v_cndmask_b32 v{vMk}, -1, v{vMk}, vcc
v_and_b32 v{vPr}, 0x1f0, v{vL16}
v_lshrrev_b32 v{vRw}, 2, v{vPr}
v_lshlrev_b32 v{vPr}, 1, v{vPr}
v_add_u32 v{vPr}, {L_X}, v{vPr}
s_lshl_b32 s{sT0}, s{sW}, 3
v_lshl_add_u32 v{vPw}, v{SQB}, 2, v{vPr}
v_add_u32 v{vPw}, s{sT0}, v{vPw}
s_lshl_b32 s{sT0}, s{sW}, 7
s_add_u32 s{sT0}, s{sT0}, {L_X + 2048}
v_add_u32 v{vRw}, s{sT0}, v{vRw}
v_lshlrev_b32 v{vRr}, 4, v{SQB}
v_add_u32 v{vRr}, s{sT0}, v{vRr}
s_mov_b32 s{sLay}, 0
s_mov_b32 s{sProg}, 0""")
    lay, isv, join = P.lbl('lay'), P.lbl('isv'), P.lbl('join')
    sFl = sM
    P(f"""{lay}:
s_lshl_b32 s{sT2}, s{sLay}, 13
s_add_u32 s{sT2}, s{sT2}, {FL_Z[0]}
s_waitcnt vmcnt(0) lgkmcnt(0)""")
    wait80(P, sT2, FB)
    stamp(P, 4)
    P(f"""s_mul_i32 s{sT0}, s{sW}, 10240
v_add_u32 v{vSr}, s{sT0}, v{vL16}
s_mul_i32 s{sSrc}, s{sLay}, {Z_OFF[1]-Z_OFF[0]}
s_add_u32 s{sSrc}, s{sSrc}, s{sT0}
s_add_u32 s{sSrc}, s{sSrc}, {Z_OFF[0]}
s_lshl_b32 s{sT0}, s{sHd}, 2
s_add_u32 s{sT0}, s{sT0}, s{sW}
s_cmp_eq_u32 s{sMat}, 2
s_cselect_b32 s{sT1}, 11, 12
s_mov_b32 s{sStr}, {KV_SEG}
s_cmov_b32 s{sStr}, {Q_SEG}
s_lshl_b32 s{sDst}, s{sT0}, s{sT1}
s_cmp_eq_u32 s{sMat}, 2
s_mov_b32 s{sT0}, {KV_OFF[1]-KV_OFF[0]}
s_cmov_b32 s{sT0}, {Q_OFF[1]-Q_OFF[0]}
s_cselect_b32 s{sT1}, {Q_OFF[0]}, {KV_OFF[0]}
s_mul_i32 s{sT0}, s{sT0}, s{sLay}
s_add_u32 s{sDst}, s{sDst}, s{sT0}
s_add_u32 s{sDst}, s{sDst}, s{sT1}
s_lshl_b32 s{sFl}, s{sHd}, 6
s_lshl_b32 s{sT0}, s{sMat}, 2
s_add_u32 s{sFl}, s{sFl}, s{sT0}
s_add_u32 s{sFl}, s{sFl}, {FL_P}
s_mov_b32 s{sFl+1}, {fl(1/640)}
s_cmp_eq_u32 s{sMat}, 1
s_cbranch_scc1 {isv}""")
    flag = f"s_add_u32 s{sProg}, s{sProg}, 1\nv_mov_b32 v{vSq}, s{sProg}\nbuffer_store_dword v{vSq}, v{vFo}, {wsr}, s{sFl} offen sc1"
    par = [0]

    def pre():
        r = [f"ds_read_b128 {V(SQB,4)}, v{vSr}\nv_mov_b32 v{vSq}, 0"]
        for i in range(10):
            b = SQB + 4 * (i % 2)
            if i < 9: r.append(f"ds_read_b128 {V(SQB+4*((i+1)%2),4)}, v{vSr} offset:{1024*(i+1)}")
            if i == 0: r.append(f"v_and_b32 v{b}, v{vMk}, v{b}")
            r.append('\n'.join(f"v_dot2c_f32_bf16 v{vSq}, v{b+j}, v{b+j}" for j in range(4)))
        r.append(f"ds_write_b32 v{vPw}, v{vSq} offset:{1024*par[0]}")
        par[0] ^= 1
        return r

    def epi(acc, isV):
        pp = 1024 * (0 if acc == ACC[0] else 1)
        r = [f"ds_read_b128 {V(RS,4)}, v{vPr} offset:{pp}\nds_read_b128 {V(RS+4,4)}, v{vPr} offset:{pp+16}", f"v_mov_b32 v{RS+8}, {fl(1e-5)}",
             '\n'.join(f"v_add_f32 v{RS+i}, v{RS+i}, v{RS+4+i}" for i in range(4)),
             f"v_add_f32 v{RS}, v{RS}, v{RS+1}\nv_add_f32 v{RS+2}, v{RS+2}, v{RS+3}\nv_add_f32 v{RS}, v{RS}, v{RS+2}",
             f"v_fma_f32 v{RS}, v{RS}, s{sFl+1}, v{RS+8}\nv_rsq_f32 v{RS}, v{RS}"]
        if not isV:
            r += [f"v_mul_f32 v{acc+2*i}, v{RS}, v{acc+2*i}\nv_mul_f32 v{acc+2*i+1}, v{RS}, v{acc+2*i+1}\n" + cvt(acc + i, acc + 2 * i) for i in range(8)]
            src = acc
        else:
            r.append(f"ds_write_b32 v{vRw}, v{RS}")
            r.append('\n'.join(f"ds_read_b128 {V(RS+4*a,4)}, v{vRr} offset:{32*a}" for a in range(4)))
            r.append('')
            for i in range(8):
                a = i // 2
                d = acc + 4 * (a % 2) + 2 * (a // 2) + i % 2
                r.append(f"v_mul_f32 v{RS+2*i}, v{RS+2*i}, v{acc+2*i}\nv_mul_f32 v{RS+2*i+1}, v{RS+2*i+1}, v{acc+2*i+1}")
            for i in range(8):
                a = i // 2
                d = acc + 4 * (a % 2) + 2 * (a // 2) + i % 2
                r.append(cvt(d, RS + 2 * i))
        o = 2048 if isV else 0
        r += [f"buffer_store_dwordx4 {V(acc+4*f,4)}, v{vSt}, {wsr}, s{sDst} offen offset:{o+512*f} sc1" for f in range(2)]
        r.append(f"s_add_u32 s{sDst}, s{sDst}, s{sStr}")
        return r

    for isV in (False, True):
        if isV: P(f"{isv}:")
        par[0] = 0
        st = Stream(P, 'frag', isV, lambda k: A(4 * k, 4), wsr, f"s_add_u32 s{sSrc}, s{sSrc}, 40960")
        st.run(64, lambda acc: epi(acc, isV), pre, flag, extra_rd=[vSr])
        if not isV: P(f"s_branch {join}")
    P(f"{join}:\ns_waitcnt vmcnt(0) lgkmcnt(0)\ns_barrier\n{flag}")
    stamp(P, 5)
    if stage < 4: return
    import fft
    fft.f_main(P)
    P(f"s_add_u32 s{sLay}, s{sLay}, 1\ns_cmp_lt_u32 s{sLay}, 2\ns_cbranch_scc1 {lay}")
```

```python
import sys
from asmlib import *
from layout import *
import team, worker
from worker import sX, sW, sBud, DBG, stamp, dump_prof, vL16
NAME = 'interleave_layers__memory_aug_recurrent_mem_tr__spectral_gfnet__prompt'


def build(stage=9, prof=False, name=NAME + '_kernel'):
    worker.PROF[0] = prof
    P = Prog('k')
    team.entry(P)
    stamp(P, 0)
    skip, end, lt, lo, lat, lp, fin, nb = (P.lbl(x) for x in ('skip', 'end', 'team', 'o', 'at', 'p', 'fin', 'nb'))
    a, b = 52, 53
    P(f"""s_getreg_b32 s{a}, hwreg(HW_REG_XCC_ID, 0, 4)
s_cmp_lg_u32 s{sW}, 0
s_cbranch_scc1 {skip}
s_mov_b64 exec, 1
s_lshl_b32 s{b}, s{a}, 2
v_mov_b32 v1, s{b}
v_mov_b32 v2, 1
global_atomic_add v3, v1, v2, s[{DBG}:{DBG+1}] sc0 sc1
v_mov_b32 v1, 0
ds_write_b32 v1, v3
s_mov_b64 exec, -1
s_waitcnt lgkmcnt(0)
{skip}:
s_barrier
v_mov_b32 v1, 0
ds_read_b32 v2, v1
v_readfirstlane_b32 s{sX}, v2
s_barrier
s_cmp_gt_u32 s{sX}, 31
s_cbranch_scc1 {end}
s_cmp_eq_u32 s{a}, 0
s_cbranch_scc1 {lt}
v_lshlrev_b32 v{vL16}, 4, v0
s_cmp_gt_u32 s{a}, 7
s_cbranch_scc1 {end}
s_cmp_gt_u32 s{sX}, 29
s_cbranch_scc1 {end}
s_cmp_gt_u32 s{a}, 4
s_cbranch_scc1 {nb}
s_mul_i32 s{b}, s{a}, 20
s_add_u32 s{b}, s{b}, s{sX}
s_sub_u32 s{b}, s{b}, 20
s_cmp_lt_u32 s{sX}, 20
s_cmov_b32 s{sX}, s{b}
s_cbranch_scc1 {lo}
s_mul_i32 s{b}, s{a}, 10
s_add_u32 s{sX}, s{sX}, s{b}
s_sub_u32 s{sX}, s{sX}, 30
s_cmp_lt_u32 s{sX}, 32
s_cbranch_scc1 {lat}
s_sub_u32 s{sX}, s{sX}, 32
s_branch {lp}
{nb}:
s_mul_i32 s{b}, s{a}, 30
s_add_u32 s{sX}, s{sX}, s{b}
s_sub_u32 s{sX}, s{sX}, 142
s_cmp_lt_u32 s{sX}, 96
s_cbranch_scc1 {lp}
{end}:
s_endpgm""")
    P(f"{lat}:")
    worker.role_at(P, stage)
    dump_prof(P, sX, 0x4000, 8)
    if stage >= 5: P(f"s_add_u32 s{sX}, s{sX}, 80\ns_branch {fin}")
    else: P("s_endpgm")
    P(f"{lp}:")
    worker.role_p(P, stage)
    dump_prof(P, sX, 0x8000, 12)
    if stage >= 5: P(f"s_add_u32 s{sX}, s{sX}, 64\ns_cmp_ge_u32 s{sX}, 144\ns_cbranch_scc1 {fin}")
    P("s_endpgm")
    P(f"{lo}:")
    worker.role_o(P, stage)
    dump_prof(P, sX, 0xc000, 8)
    if stage >= 5:
        P(f"{fin}:")
        worker.final_gemm(P)
        stamp(P, 1)
        dump_prof(P, sX, 0x10000, 2)
    P("s_endpgm")
    P(f"{lt}:")
    if stage >= 2:
        wl = [P.lbl(f'w{w}') for w in range(4)]
        for w in range(1, 4): P(f"s_cmp_eq_u32 s{sW}, {w}\ns_cbranch_scc1 {wl[w]}")
        for w in range(4):
            P(f"{wl[w]}:")
            team.prologue(P, w)
            stamp(P, 5)
            w0 = worker.sT0; worker.sT0 = team.sT0
            worker.wait_dbg(P, D_INIT2, 32, 8)
            worker.sT0 = w0
            P(f"s_mov_b32 s{team.sSeen}, 0")
            for layer in range(2 if stage >= 4 else 1):
                team.layer_init(P, w, layer, 32 * (layer + 1))
                stamp(P, 6 + 2 * layer)
                team.step_loop(P, w, layer, None, chk=True)
                stamp(P, 7 + 2 * layer)
            dump_prof(P, sX, 0, 10)
            if stage >= 5: P(f"s_add_u32 s{sX}, s{sX}, 112\ns_waitcnt vmcnt(0) lgkmcnt(0)\ns_barrier\ns_branch {fin}")
            else: P("s_endpgm")
    else:
        P("s_endpgm")
    body = P.finish()
    return kernel_text(name, body), P


def full_text(**kw):
    txt, P = build(**kw)
    hdr = [l for l in open(f'cdna_kernels/{NAME}.s.ref').read().split('\n') if l.startswith(';') and '@launch' not in l]
    return '\n'.join(hdr) + '\n; @launch grid=(256,1,1) block=(256,1,1) lds=163840\n.amdgcn_target "amdgcn-amd-amdhsa--gfx950"\n' + txt, P


if __name__ == '__main__':
    stage = int(sys.argv[1]) if len(sys.argv) > 1 else 9
    out = sys.argv[2] if len(sys.argv) > 2 else 'main.s'
    txt, P = full_text(stage=stage, prof=len(sys.argv) > 3)
    open(out, 'w').write(txt)
    print(len(P.ins), 'instr', P.n_nop, 'nops', P.n_wait, 'waits', len(txt), 'bytes')
```
